```python
import torch

def _softmax(x, axis=-1):
    return torch.softmax(x, dim=axis)

def _gelu(x):
    return torch.nn.functional.gelu(x, approximate='tanh')

def _silu(x):
    return torch.nn.functional.silu(x)

def _sigmoid(x):
    return torch.sigmoid(x)

def _layernorm(x, axis=-1, eps=1e-05):
    m = x.mean(dim=axis, keepdim=True)
    v = x.var(dim=axis, keepdim=True, unbiased=False)
    return (x - m) / torch.sqrt(v + eps)

def _scatter_add(tgt, idx, src, axis=0):
    return tgt.clone().index_add_(axis, idx, src)

def _segment_sum(src, seg, n):
    out = torch.zeros((n,) + src.shape[1:], dtype=src.dtype)
    return out.index_add_(0, seg, src)

def _pad(x, pw):
    flat = tuple((v for pair in reversed(pw) for v in pair))
    return torch.nn.functional.pad(x, flat)
kernel_name = 'standalone__video_video_swin__vision'

def setup_inputs():

    _w = lambda a: (lambda t: t.to(torch.bfloat16) if t.is_floating_point() else t)(torch.as_tensor(a))
    T = 4
    H = W = 384 // 8 * 8
    C, win = (96, 8)
    return {'x': _w((lambda *s: torch.randn(*s, dtype=torch.bfloat16) * 0.1)(1, T, H, W, C)), 'wqkv_t': _w((lambda *s: torch.randn(*s, dtype=torch.bfloat16) * 0.1)(C, 3 * C)), 'wo_t': _w((lambda *s: torch.randn(*s, dtype=torch.bfloat16) * 0.1)(C, C)), 'wqkv_s': _w((lambda *s: torch.randn(*s, dtype=torch.bfloat16) * 0.1)(C, 3 * C)), 'wo_s': _w((lambda *s: torch.randn(*s, dtype=torch.bfloat16) * 0.05)(C, C))}

def reference(x, wqkv_t, wo_t, wqkv_s, wo_s):
    B, T, H, W, C = x.shape
    win = 8
    scale = C ** (-0.5)
    h = _layernorm(x, axis=-1)
    ht = (lambda x, *d: x.permute(*d))(h, 0, 2, 3, 1, 4).reshape(B * H * W, T, C)
    qkv = ht @ wqkv_t
    q, k, v = (qkv[..., :C].clone(), qkv[..., C:2 * C].clone(), qkv[..., 2 * C:].clone())
    p = _softmax(torch.einsum('btc,bsc->bts', q, k) * scale, axis=-1)
    ot = torch.einsum('bts,bsc->btc', p, v) @ wo_t
    ot = (lambda x, *d: x.permute(*d))(ot.reshape(B, H, W, T, C), 0, 3, 1, 2, 4)
    x = x + ot
    h = _layernorm(x, axis=-1)
    nh, nw = (H // win, W // win)
    hs = h.reshape(B * T, nh, win, nw, win, C)
    hw = (lambda x, *d: x.permute(*d))(hs, 0, 1, 3, 2, 4, 5).reshape(B * T * nh * nw, win * win, C)
    qkv = hw @ wqkv_s
    q, k, v = (qkv[..., :C].clone(), qkv[..., C:2 * C].clone(), qkv[..., 2 * C:].clone())
    p = _softmax(torch.einsum('bqc,bkc->bqk', q, k) * scale, axis=-1)
    os = torch.einsum('bqk,bkc->bqc', p, v) @ wo_s
    os = (lambda x, *d: x.permute(*d))(os.reshape(B * T, nh, nw, win, win, C), 0, 1, 3, 2, 4, 5)
    os = os.reshape(B, T, H, W, C)
    return x + os
```

```python
import sys, os, subprocess, struct, ctypes
sys.path.insert(0, "cdna_kernels")
import numpy as np

HDR = """.amdgcn_target "amdgcn-amd-amdhsa--gfx950"
.text
"""
META_HEAD = """
.amdgpu_metadata
---
amdhsa.version: [1, 2]
amdhsa.kernels:
"""
META_K = """  - .name: {name}
    .symbol: {name}.kd
    .kernarg_segment_size: {ka}
    .kernarg_segment_align: 8
    .group_segment_fixed_size: 0
    .private_segment_fixed_size: 0
    .wavefront_size: 64
    .sgpr_count: 102
    .vgpr_count: {vg}
    .max_flat_workgroup_size: 1024
    .args:
      - {{.name: kernargs, .size: {ka}, .offset: 0, .value_kind: by_value}}
"""
META_TAIL = """...
.end_amdgpu_metadata
"""

def kernel_text(name, body, vgprs=128, accum=None, ka=32):
    accum = accum or min(256, (vgprs + 3) // 4 * 4)
    return f""".text
.globl {name}
.p2align 8
.type {name},@function
{name}:
{body}
s_endpgm
.section .rodata,"a"
.p2align 6
.amdhsa_kernel {name}
  .amdhsa_next_free_vgpr {vgprs}
  .amdhsa_next_free_sgpr 102
  .amdhsa_accum_offset {accum}
  .amdhsa_group_segment_fixed_size 0
  .amdhsa_kernarg_size {ka}
  .amdhsa_user_sgpr_count 2
  .amdhsa_user_sgpr_kernarg_segment_ptr 1
  .amdhsa_system_sgpr_workgroup_id_x 1
.end_amdhsa_kernel
"""

def build(kernels, path, ka=32):
    s = HDR
    for (n, b, v) in kernels:
        s += kernel_text(n, b, v, ka=ka)
    s += META_HEAD
    for (n, b, v) in kernels:
        s += META_K.format(name=n, ka=ka, vg=v)
    s += META_TAIL
    open(path + ".s", "w").write(s)
    r = subprocess.run(["clang", "-x", "assembler", "-target", "amdgcn-amd-amdhsa",
                        "-mcpu=gfx950", path + ".s", "-o", path + ".co"], capture_output=True, text=True)
    if r.returncode:
        print(r.stderr[:4000]); raise SystemExit(1)

def timed_loop(body, iters, init="", role_bodies=None):
    pre = f"""
    s_load_dwordx2 s[4:5], s[0:1], 0
    v_lshrrev_b32 v120, 6, v0
    s_nop 1
    v_readfirstlane_b32 s20, v120
    s_waitcnt lgkmcnt(0)
    s_mov_b32 s8, s4
    s_mov_b32 s9, s5
    s_mov_b32 s10, 0x100000
    s_mov_b32 s11, 0x00020000
{init}
    s_barrier
"""
    post = """
    s_memtime s[14:15]
    s_waitcnt lgkmcnt(0)
    s_sub_u32 s14, s14, s12
    s_lshl_b32 s3, s2, 4
    s_add_u32 s3, s3, s20
    s_lshl_b32 s3, s3, 2
    v_mov_b32 v121, s3
    v_mov_b32 v122, s14
    buffer_store_dword v122, v121, s[8:11], 0 offen
    s_waitcnt vmcnt(0)
"""
    if role_bodies is None:
        loop = f"""
    s_memtime s[12:13]
    s_waitcnt lgkmcnt(0)
    s_mov_b32 s16, {iters}
.p2align 6
1:
{body}
    s_sub_u32 s16, s16, 1
    s_cmp_lg_u32 s16, 0
    s_cbranch_scc1 1b
"""
    else:
        loop = f"""
    s_memtime s[12:13]
    s_waitcnt lgkmcnt(0)
    s_mov_b32 s16, {iters}
    s_lshr_b32 s21, s20, 2
    s_and_b32 s21, s21, 1
    s_cmp_eq_u32 s21, 0
    s_cbranch_scc0 3f
.p2align 6
1:
{role_bodies[0]}
    s_sub_u32 s16, s16, 1
    s_cmp_lg_u32 s16, 0
    s_cbranch_scc1 1b
    s_branch 4f
3:
.p2align 6
2:
{role_bodies[1]}
    s_sub_u32 s16, s16, 1
    s_cmp_lg_u32 s16, 0
    s_cbranch_scc1 2b
4:
"""
    return pre + loop + post

def run(path, specs, nwg=256, lds=0):
    from cdna_launch import AsmKernel, DeviceBuffer, _hip, _check as hip_check
    out = DeviceBuffer(1 << 20)
    res = {}
    for (name, waves) in specs:
        k = AsmKernel(path + ".co", name)
        ka = struct.pack("<4Q", out.ptr, 0, 0, 0)
        for rep in range(2):
            hip_check(_hip.hipMemset(ctypes.c_void_p(out.ptr), 0, 1 << 20))
            k.launch((nwg, 1, 1), (64 * waves, 1, 1), ka, lds)
            hip_check(_hip.hipDeviceSynchronize())
        a = out.to_numpy(np.uint32, (1 << 18,))[: nwg * 16].reshape(nwg, 16)[:, :waves]
        res[(name, waves)] = a
        k.unload()
    return res
```

```python
import sys, struct, ctypes, time
sys.path.insert(0, "bench")
from ubench import *
import numpy as np
M32 = "v_mfma_f32_32x32x16_bf16 v[{d}:{d}+15], v[{a}:{a}+3], v[{b}:{b}+3], v[{d}:{d}+15]"
M16 = "v_mfma_f32_16x16x32_bf16 v[{d}:{d}+3], v[{a}:{a}+3], v[{b}:{b}+3], v[{d}:{d}+3]"
def kern(body, iters, rnd=True):
    s = f"""
    s_load_dwordx2 s[4:5], s[0:1], 0
    s_load_dwordx2 s[24:25], s[0:1], 8
    v_lshrrev_b32 v120, 6, v0
    v_lshlrev_b32 v121, 4, v0
    v_readfirstlane_b32 s20, v120
    s_waitcnt lgkmcnt(0)
    s_mov_b32 s8, s4
    s_mov_b32 s9, s5
    s_mov_b32 s10, 0x100000
    s_mov_b32 s11, 0x00020000
    s_mov_b32 s28, s24
    s_mov_b32 s29, s25
    s_mov_b32 s30, 0x100000
    s_mov_b32 s31, 0x00020000
"""
    for k in range(12):
        s += f"    s_mov_b32 s38, {k*16384}\n    buffer_load_dwordx4 v[{64+4*k}:{67+4*k}], v121, s[28:31], s38 offen\n"
    s += "    s_waitcnt vmcnt(0)\n"
    for k in range(64): s += f"    v_mov_b32 v{k}, 0\n"
    if not rnd:
        for k in range(64, 112): s += f"    v_mov_b32 v{k}, 0\n"
    s += f"""
    s_barrier
    s_memrealtime s[40:41]
    s_memtime s[12:13]
    s_waitcnt lgkmcnt(0)
    s_mov_b32 s16, {iters}
.p2align 6
1:
{body}
    s_sub_u32 s16, s16, 1
    s_cmp_lg_u32 s16, 0
    s_cbranch_scc1 1b
    s_memtime s[14:15]
    s_memrealtime s[42:43]
    s_waitcnt lgkmcnt(0)
    s_sub_u32 s14, s14, s12
    s_sub_u32 s15, s42, s40
    s_lshl_b32 s3, s2, 4
    s_add_u32 s3, s3, s20
    s_lshl_b32 s3, s3, 3
    v_mov_b32 v121, s3
    v_mov_b32 v122, s14
    v_mov_b32 v123, s15
    buffer_store_dwordx2 v[122:123], v121, s[8:11], 0 offen
    s_waitcnt vmcnt(0)
"""
    return s
m32 = "\n".join(M32.format(d=16*(i%4), a=64+4*(i%6), b=88+4*((i//2)%6)) for i in range(24))
m16 = "\n".join(M16.format(d=4*(i%16), a=64+4*(i%6), b=88+4*((i//2)%6)) for i in range(48))
def mix(k):
    o = []
    for i in range(24):
        o.append(M32.format(d=16*(i%3), a=64+4*(i%6), b=88+4*((i//2)%6)))
        for j in range(k): o.append(f"v_fma_f32 v{48+(i*k+j)%16}, v{64+(i+j)%48}, v{64+(i*7+j)%48}, v{48+(i*k+j)%16}")
    return "\n".join(o)
nop = "\n".join("s_nop 7" for i in range(24))
T = 60000 // 768
tests = {"nop": (kern(nop, 150), 8), "m32": (kern(m32, T), 8), "m16": (kern(m16, T), 8), "m32z": (kern(m32, T, False), 8),
         "mix3": (kern(mix(3), T), 8), "mix6": (kern(mix(6), T), 8), "m32h": (kern(m32 + "\n" + nop + "\n" + nop, T // 2), 8),
         "m32long": (kern(m32, T * 20), 8), "m16long": (kern(m16, T * 20), 8)}
build([(f"k_{n}", b, 128) for n, (b, w) in tests.items()], "clk")
if len(sys.argv) > 1:
    from cdna_launch import AsmKernel, DeviceBuffer, _hip, _check
    import torch
    out = DeviceBuffer(1 << 20)
    r = (torch.randn(1 << 19) * 0.5).to(torch.bfloat16).view(torch.int16).numpy().view(np.uint16)
    buf = DeviceBuffer.from_numpy(r); ws = DeviceBuffer(452984832)
    ka = struct.pack("<4Q", out.ptr, buf.ptr, 0, 0)
    for n, (b, w) in tests.items():
        k = AsmKernel("clk.co", f"k_{n}")
        s = f"{n:8s}"
        for pre in ("idle", "memset", "b2b"):
            cl = []
            for rep in range(6):
                if pre == "idle": time.sleep(0.01)
                if pre == "memset": _check(_hip.hipMemset(ctypes.c_void_p(ws.ptr), 1, ctypes.c_size_t(452984832))); _check(_hip.hipDeviceSynchronize())
                if pre == "b2b":
                    for q in range(200): k.launch((256, 1, 1), (64 * w, 1, 1), ka, 0)
                k.launch((256, 1, 1), (64 * w, 1, 1), ka, 0)
                _check(_hip.hipDeviceSynchronize())
                a = out.to_numpy(np.uint32, (1 << 18,))[: 256 * 32].reshape(256, 16, 2)[:, :w].astype(np.float64)
                cl.append((np.median(a[..., 0]), np.median(a[..., 1]) / 100))
            c = np.median(np.array(cl), axis=0)
            s += f" | {pre}: {c[0]:8.0f} cyc {c[1]:7.1f} us {c[0]/c[1]/1000:5.3f} GHz"
        print(s, flush=True)
        k.unload()
```

```python
from fw8 import *
FS, RS, NB = 28311552, 73728, 113246208
V_DMA = 0
V_XE, V_XO, V_YE, V_YO, V_ZE, V_W, V_BP = 6, 7, 8, 9, 10, 11, 12
V_ZO, V_ZR = 21, 18
RQ = [13, 14]; RK = [15, 16]; MX = [17, 17]; SMV, TMP = 19, 20; V_ID = 22; X8 = 24
def XR2(t, s): return 32 + 24 * t + 4 * s
def B(k): return 80 + 16 * k
R = [B(k) for k in range(5)]; Pb = [B(5 + k) for k in range(6)]
def XR1(t, s): return 256 + 24 * t + 4 * s
def SELA(t): return 256 + 48 + 4 * t
RING = 256 + 56
def RES(j): return 256 + 72 + 4 * j
NRES_MT = 10
S_X, S_OUT = 16, 20
S_W, S_REG, S_U, S_N0, S_N1, S_BQ, S_CQ = 32, 35, 36, 38, 39, 40, 41
S_CUR = 44
S_PM, S_DM = 48, 56
S_HI, S_EPS, S_96 = 62, 64, 67
S_DX, S_DY = 65, 66
def sp(a): return f"s[{a}:{a+1}]"
def sq(a): return f"s[{a}:{a+3}]"
def cnd(P, d, f, t, m):
    fs = f"v{f}" if isinstance(f, int) else f
    return P.add(f"v_cndmask_b32_e64 v{d}, {fs}, v{t}, {sp(m)}", 'v', [d], [t] + ([f] if isinstance(f, int) else []))
def dppmul(P, d, a, b, ctl): return P.add(f"v_mul_f32_dpp v{d}, v{a}, v{b} {ctl} row_mask:0xf bank_mask:0xf", 'd', [d], [a, b])
def cvt8(P, d, a):
    for k in range(8): P.cvt(d + k, a + 2 * k, a + 2 * k + 1)
def xaddr(e, o, t, s): return (e if s % 2 == 0 else o), t * 6144 + (s >> 1) * 64
def stats(P, XR, acc, r, tg):
    G = [acc, acc + 4]; S = acc + 8
    for t in range(2):
        P.tag = f"{tg}g{t}"
        for k in range(12):
            x = XR(t, k >> 1) + 2 * (k & 1); P.mfma('m4', G[t], x, x, None if k == 0 else G[t])
        for j in range(1, 4): cnd(P, G[t], G[t], G[t] + j, S_DM + 2 * (j - 1))
        P.tag = f"{tg}s{t}"
        for s in range(6): P.mfma('m16', S, SELA(t), XR(t, s), None if (t == 0 and s == 0) else S)
    P.tag = f"{tg}f"
    P.swap32(G[0], G[1]); P.v("v_add_f32", G[0], G[0], G[1])
    P.v("v_fma_f32", S, f"-v{S}", S, f"s{S_EPS}")
    P.v("v_fma_f32", G[0], G[0], f"s{S_96}", S)
    P.v("v_max_f32", G[0], f"s{S_EPS}", G[0])
    P.v("v_rsq_f32", r, G[0], kind='t')
def cinit_v(P, acc, src):
    for s2 in range(2):
        for k in range(4):
            x = src(s2) + k
            P.v("v_lshlrev_b32", acc + 8 * s2 + 2 * k, "16", x)
            P.v("v_and_b32", acc + 8 * s2 + 2 * k + 1, f"s{S_HI}", x)
def cinit_m(P, acc, src):
    for j in range(4): P.mfma('m4', acc + 4 * j, V_ID, src(j >> 1) + 2 * (j & 1))
def stage1(cfg):
    P = Prog(); rp = [0]
    def ring():
        k = rp[0]; rp[0] += 1; d = RING + 4 * (k % 4)
        P.dsr(d, V_W, k * 1024); return d
    for t in range(2):
        P.tag = f'xr1{t}'
        for s in range(6):
            a, o = xaddr(V_XE, V_XO, t, s); P.dsr(XR1(t, s), a, o, mem=[('x', t, s)])
    Q = R[4]; r = Q + 12
    stats(P, XR1, Q, r, 'st1')
    accA = [(R[0], R[1]), (R[2], R[3]), (R[0], R[1])]
    Sacc = [Q, Q + 4]
    for b in range(3):
        P.tag = f'A1{b}'
        for s in range(6):
            m = 6 * b + s; f = RES(m) if m < NRES_MT else ring()
            for t in range(2): P.mfma('m32', accA[b][t], f, XR1(t, s), None if s == 0 else accA[b][t])
        P.tag = f'C1{b}'
        for t in range(2):
            cvt8(P, accA[b][t], accA[b][t])
            for k in range(4): P.mfma('m4', Sacc[t], XR1(t, 2 * b + (k >> 1)) + 2 * (k & 1), accA[b][t] + 2 * k, None if (b == 0 and k == 0) else Sacc[t])
    P.tag = 'SMs'
    T = [Q + k for k in range(4)]; mx, nm, sm = Q + 10, Q + 11, Q + 13; Wa, Wb = Q + 8, Q + 14
    qp = lambda k: f"quad_perm:[{k},{k},{k},{k}]"
    for k in range(4):
        P.swap32(Q + k, Q + 4 + k); P.v("v_add_f32", T[k], Q + k, Q + 4 + k); dppmul(P, T[k], r, T[k], qp(k))
    P.v("v_max3_f32", mx, T[0], T[1], T[2]); P.v("v_max_f32", mx, mx, T[3]); P.v("v_mul_f32", nm, mx, r)
    for k in range(4):
        P.v("v_fma_f32", T[k], T[k], r, f"-v{nm}"); P.v("v_exp_f32", T[k], T[k], kind='t')
    P.v("v_add_f32", sm, T[0], T[1]); P.v("v_add_f32", mx, T[2], T[3]); P.v("v_add_f32", sm, sm, mx)
    P.v("v_rcp_f32", sm, sm, kind='t')
    for k in range(4): dppmul(P, T[k], r, T[k], qp(k))
    for k in range(4): P.v("v_mul_f32", T[k], T[k], sm)
    for k in range(2):
        P.cvt(Wa + k, T[2 * k], T[2 * k + 1]); P.cvt(Wb + k, T[2 * k], T[2 * k + 1]); P.swap32(Wa + k, Wb + k)
    PP = lambda t, u: Q + 8 * t + 4 * u
    for t in range(2):
        for u in range(2):
            for e in range(2):
                for k in range(2): cnd(P, PP(t, u) + 2 * e + k, "0", (Wa, Wb)[t] + k, S_PM + 2 * (2 * u + e))
    accU = [(R[2], R[3]), (R[0], R[1]), (R[2], R[3])]
    accO = [(R[3], R[1]), (R[1], R[3]), (R[0], R[1])]
    def Ublk(b):
        P.tag = f'U1{b}'
        for s in range(6):
            f = ring()
            for t in range(2): P.mfma('m32', accU[b][t], XR1(t, s), f, None if s == 0 else accU[b][t])
        P.tag = f'V1{b}'
        for t in range(2): cvt8(P, accU[b][0] + 8 * t, accU[b][t])
    def Oblk(b):
        for t in range(2):
            P.tag = f'O1{b}{t}'; a = accO[b][t]
            if (2 * b + t) in cfg.c1v:
                for s2 in range(2):
                    ad, o = xaddr(V_XE, V_XO, t, 2 * b + s2); P.dsr(a + 8 + 4 * s2, ad, o, mem=[('x', t, 2 * b + s2)])
                cinit_v(P, a, lambda s2: a + 8 + 4 * s2)
            else: cinit_m(P, a, lambda s2: XR1(t, 2 * b + s2))
            for u in range(2): P.mfma('m32', a, accU[b][0] + 8 * t + 4 * u, PP(t, u), a)
            cvt8(P, a, a)
            for s2 in range(2):
                ad, o = xaddr(V_XE, V_XO, t, 2 * b + s2); P.dsw(ad, a + 4 * s2, o, mem=[('x', t, 2 * b + s2)])
    Ublk(0); Ublk(1); Oblk(0); Ublk(2); Oblk(1); Oblk(2)
    P.tag = 'xt'
    for v in (V_XE, V_XO): P.add(f"v_add_u32 v{v}, s{S_DX}, v{v}", 'v', [v], [v], suse=['dx'])
    P.s(f"s_sub_u32 s{S_DX}, 0, s{S_DX}", sdef=['dx', 'scc'])
    return P.l
def unit_base(dst, u, t0, t1):
    return [f"s_mul_i32 s{t0}, s{u}, 43691", f"s_lshr_b32 s{t0}, s{t0}, 21", f"s_mul_i32 s{t1}, s{t0}, 48",
            f"s_sub_u32 s{t1}, s{u}, s{t1}", f"s_mul_i32 s{t0}, s{t0}, {8*RS}", f"s_mul_i32 s{t1}, s{t1}, 1536", f"s_add_u32 s{dst}, s{t0}, s{t1}"]
def dma_group(P, cfg, dep, ts=(0, 1)):
    for t in ts:
        for n in range(6):
            P.tag = f'dma{t}{n}'
            if n % 3 == 0: P.s(f"s_add_u32 m0, s{S_REG}, {t*6144+n*1024}", sdef=['m0', 'scc'], suse=['reg'])
            P.add(f"buffer_load_dwordx4 v{V_DMA+n}, {sq(S_X)}, s{(S_N0, S_N1)[t]} offen offset:{(n%3)*1024}{cfg.nt_load} lds", 'dma',
                  [], [V_DMA + n] + (rng(XR2(t, 0), 24) if dep else []), suse=['m0', 'nxt'])
def zmem(t, half): return [('z', t + half)]
def store(P, cfg, t, b, d):
    for u in range(2):
        a, o = xaddr(V_ZE, V_ZO, 0, 2 * b + u); P.dsw(a, d + 4 * u, o + 3072 * t, mem=[('z', t, 2 * b + u), ('z', t + 1, 2 * b + u)])
def flush(P, cfg, t, tmp, order=range(6)):
    for n in order:
        P.tag = f'F2{t}{n}'
        P.dsr(tmp[n], V_ZR, 1024 * n + 3072 * t, mem=[('z', t + n // 3, s) for s in range(6)])
        P.add(f"buffer_store_dwordx4 {vr(tmp[n],4)}, v{V_DMA+n}, {sq(S_OUT)}, s{S_CUR+t} offen offset:{(n%3)*1024}{cfg.st_pol}", 'vst', [], rng(tmp[n], 4) + [V_DMA + n], suse=['cur'])
def cur_update(P, cfg):
    P.tag = 'cu'
    P.s(f"s_mov_b32 s{S_CUR}, s{S_BQ}", sdef=['cur'], suse=['bq']); P.s(f"s_add_u32 s{S_CUR+1}, s{S_BQ}, {RS}", sdef=['cur', 'scc'], suse=['bq'])
    P.s(f"s_mov_b32 s{S_BQ}, s{S_CQ}", sdef=['bq'], suse=['cq']); P.s(f"s_mov_b32 s{S_CQ}, s{S_N0}", sdef=['cq'], suse=['nxt'])
def stage2(cfg, dma=True):
    P = Prog(); P0, P1, P2, P3, P4, P5 = Pb
    if dma:
        P.tag = 'nx'
        for t in [f"s_add_u32 s{S_U}, s{S_U}, 256"] + unit_base(S_N0, S_U, 42, 43) + [f"s_cmp_lt_u32 s{S_U}, 2304",
                  f"s_cselect_b32 s{S_N0}, s{S_N0}, 0x80000000", f"s_add_u32 s{S_N1}, s{S_N0}, {RS}"]: P.s(t, sdef=['nxt', 'scc'])
    for t in range(2):
        P.tag = f'xr2{t}'
        for s in range(6):
            a, o = xaddr(V_YE, V_YO, t, s); P.dsr(XR2(t, s), a, o)
        if dma: dma_group(P, cfg, True, (t,))
    P.tag = 'yt'
    for v in (V_YE, V_YO): P.add(f"v_add_u32 v{v}, s{S_DY}, v{v}", 'v', [v], [v], suse=['dy'])
    if dma: P.s(f"s_add_u32 s{S_REG}, s{S_REG}, s{S_DY}", sdef=['reg', 'scc'], suse=['dy'])
    P.s(f"s_sub_u32 s{S_DY}, 0, s{S_DY}", sdef=['dy', 'scc'])
    cur_update(P, cfg)
    if cfg.dbg == 'x1':
        h = P.l; P = Prog(); P.tag = 'O200'
        for t in range(2):
            P.tag = 'O200'
            for b in range(3): store(P, cfg, t, b, XR2(t, 2 * b))
            flush(P, cfg, t, [P0 + 4 * n for n in range(6)])
        return h, P.l
    r = P5 + 12
    stats(P, XR2, P5, r, 'st2')
    P.v("v_mov_b32", RQ[0], r); P.v("v_mov_b32", RQ[1], r); P.swap32(RQ[0], RQ[1])
    for kt in range(2): P.add(f"ds_bpermute_b32 v{RK[kt]}, v{V_BP}, v{r} offset:{128*kt}", 'dsb', [RK[kt]], [V_BP, r])
    accA = [[P0, P1, P2], [P2, P5, P2]]; Af = [[P3, P3 + 8, P4], [P4 + 8, P3, P3 + 8]]; Sa = [[P0, P1], [P2, P5]]
    for q in range(2):
        for b in range(3):
            P.tag = f'A2{q}{b}'
            for s in range(6): P.mfma('m32', accA[q][b], RES(10 + 6 * b + s), XR2(q, s), None if s == 0 else accA[q][b])
            cvt8(P, Af[q][b], accA[q][b])
        P.tag = f'S2{q}'
        for s in range(6):
            for kt in range(2): P.mfma('m32', Sa[q][kt], XR2(kt, s), Af[q][s >> 1] + 4 * (s & 1), None if s == 0 else Sa[q][kt])
    def softmax(q):
        S = [Sa[q][k >> 4] + (k & 15) for k in range(32)]; mx = MX[q]
        rk = lambda k: dppmul(P, S[k], RK[k >> 4], S[k], f"row_newbcast:{k&15}")
        P.tag = f'SM{q}a'
        for k in range(32):
            rk(k)
            if k == 2: P.v("v_max3_f32", mx, S[0], S[1], S[2])
            elif k > 2 and k % 2 == 0: P.v("v_max3_f32", mx, mx, S[k - 1], S[k])
        P.v("v_max_f32", TMP, mx, S[31]); P.v("v_max_f32", mx, mx, S[31])
        P.swap32(mx, TMP); P.v("v_max_f32", mx, mx, TMP); P.v("v_mul_f32", mx, mx, RQ[q])
        P.tag = f'SM{q}b'
        for k in range(32):
            P.v("v_fma_f32", S[k], S[k], RQ[q], f"-v{mx}"); P.v("v_exp_f32", S[k], S[k], kind='t')
            if k == 1: P.v("v_add_f32", SMV, S[0], S[1]); rk(0)
            elif k > 1: P.v("v_add_f32", SMV, SMV, S[k])
            if k >= 1: rk(k)
        P.v("v_mov_b32", TMP, SMV); P.swap32(SMV, TMP); P.v("v_add_f32", SMV, SMV, TMP); P.v("v_rcp_f32", SMV, SMV, kind='t')
        P.tag = f'SM{q}c'
        for k in range(0, 32, 2):
            P.v("v_mul_f32", S[k], S[k], SMV); P.v("v_mul_f32", S[k + 1], S[k + 1], SMV); P.cvt(Sa[q][0] + k // 2, S[k], S[k + 1])
    accU = [[P3, P4], [P4, P1], [P1, P1]]; Uf = [[P3, P3 + 8], [P4, P4 + 8], [X8, P1]]
    softmax(0)
    for b in range(3):
        for kt in range(2):
            P.tag = f'U2{b}{kt}'
            for s in range(6): P.mfma('m32', accU[b][kt], XR2(kt, s), RES(28 + 6 * b + s), None if s == 0 else accU[b][kt])
            cvt8(P, Uf[b][kt], accU[b][kt])
    n0 = len(P.l)
    softmax(1)
    accO = [[R[2], R[3], P5], [P0, P3, P4]]
    for q in range(2):
        for b in range(3):
            P.tag = f'O2{q}{b}'; a = accO[q][b]
            (cinit_m if (3 * q + b) in cfg.c2m else cinit_v)(P, a, lambda s2: XR2(q, 2 * b + s2))
            for k in range(4): P.mfma('m32', a, Uf[b][k >> 1] + 4 * (k & 1), Sa[q][0] + 4 * k, a)
            cvt8(P, a, a); store(P, cfg, q, b, a)
        if q == 0: flush(P, cfg, 0, {3 + n: accO[0][n] + 8 for n in range(3)}, (3, 4, 5))
    if cfg.late:
        flush(P, cfg, 0, [X8 + 4 * (n & 1) for n in range(3)], (0, 1, 2))
        flush(P, cfg, 1, [X8 + 4 * (~n & 1) for n in range(6)])
    else:
        flush(P, cfg, 0, [accO[0][n] + 12 for n in range(3)], (0, 1, 2))
        flush(P, cfg, 1, [accO[1][n >> 1] + 8 + 4 * (n & 1) for n in range(6)])
    return P.l[:n0 + cfg.cut], P.l[n0 + cfg.cut:]
ST_TAIL = {'SM1a': -600, 'SM1b': -300, 'SM1c': 300, 'O200': 0, 'O201': 200, 'O202': 700, 'O210': 1000, 'O211': 1300, 'O212': 1600}
ST_TAIL.update({f'F20{n}': 1000 + 200 * (n - 3) if n >= 3 else 3600 + 400 * n for n in range(6)}); ST_TAIL.update({f'F21{n}': 4800 + 400 * n for n in range(6)})
ST_S1 = {'xr10': -100, 'xr11': -50, 'st1g0': 250, 'st1s0': 300, 'st1g1': 400, 'st1s1': 450, 'st1f': 600, 'A10': 600, 'C10': 1000, 'A11': 1100, 'C11': 1500,
         'A12': 1700, 'C12': 2100, 'SMs': 2500, 'U10': 4300, 'V10': 4700, 'U11': 4900, 'V11': 5300, 'O100': 5500, 'O101': 5700, 'U12': 6000, 'V12': 6400,
         'O110': 6300, 'O111': 6700, 'O120': 6900, 'O121': 7100, 'xt': 7400}
ST_HEAD = {'nx': 0, 'xr20': 900, 'xr21': 1900, 'yt': 2300, 'cu': 2400, 'st2g0': 2200, 'st2s0': 2250, 'st2g1': 2400, 'st2s1': 2450, 'st2f': 2600,
           'A200': 2500, 'A201': 2700, 'A202': 2900, 'S20': 3200, 'A210': 3600, 'A211': 3800, 'A212': 4000, 'S21': 4300, 'SM0a': 3700, 'SM0b': 4000, 'SM0c': 4900,
           'U200': 5300, 'U201': 5500, 'U210': 5800, 'U211': 6100, 'U220': 6600, 'U221': 7000, 'SM1a': 5600, 'SM1b': 6400, 'SM1c': 7400}
ST_HEAD.update({f'dma{t}{n}': 1200 + 1600 * t + 270 * n for t in range(2) for n in range(6)})
def retag(l, pre):
    for x in l: x.tag = pre + x.tag
def block(cfg, which):
    st = {}
    if which == 'loop' or which == 'k1':
        h, t = stage2(cfg); s1 = stage1(cfg); retag(t, 't'); seq = (t if which == 'loop' else []) + h + s1
        st.update({'t' + k: v for k, v in ST_TAIL.items()}); st.update(ST_S1); st.update(ST_HEAD)
        if which == 'k1':
            for k in ST_HEAD: st[k] = (st[k] - 2000) * 0.9 if st[k] > 2000 else 0
    elif which == 'kl':
        h, t = stage2(cfg, dma=False); cfg.late, sv = False, cfg.late; _, t2 = stage2(cfg, dma=False); cfg.late = sv; retag(t, 't'); retag(t2, 'u'); seq = t + h + t2
        st.update({'t' + k: v for k, v in ST_TAIL.items()}); st.update(ST_HEAD); st.update({'u' + k: (v if k[0] != 'F' else 1900) + 8000 for k, v in ST_TAIL.items()})
    elif which == 'k0':
        seq = stage1(cfg); st.update(ST_S1)
    setprio(seq, st)
    return seq
class Cfg:
    dbg = None; nt_load = " nt"; st_pol = ""; cut = 110; late = True; c1v = (); c2m = ()
    it1 = 2000; it2 = 1000000; prof = False; pf = True; sp = {}
    def __init__(s, **k):
        for a, b in k.items(): setattr(s, a, b)
def parse(args):
    kw = {}
    for a in args:
        k, v = a.split("=", 1)
        try: v = eval(v)
        except Exception: pass
        kw[k] = v
    return Cfg(**kw)
if __name__ == "__main__":
    cfg = parse(sys.argv[2:]); w = sys.argv[1]
    out, T, _ = schedule(block(cfg, w), w, loop=(w == 'loop'), it1=cfg.it1, it2=cfg.it2, **cfg.sp)
    first = {}; last = {}
    for x in out:
        if x.t >= 0: first.setdefault(x.tag, x.t); last[x.tag] = x.t
    print(" ".join(f"{k}:{first[k]}-{last[k]}" for k in first))
```

```python
import sys, os, struct
sys.path.insert(0, os.path.dirname(os.path.abspath(__file__)))
from s8 import *
KN = "standalone__video_video_swin__vision_kernel"
def f2u(x): return struct.unpack("<I", struct.pack("<f", x))[0]
KAPPA = 96 ** -0.5 * 1.4426950408889634 * 9216
K = 1024
PA, PV_G, PV_K, PV_O, PV_WA, PV_WB, PV_L, PV_S = 32, 35, 36, 38, 39, 40, 41, 42
S_MAT, S_K96, S_KAP, S_KN, S_96P = 33, 63, 70, 72, 74
def OA(a, s): return 256 + 72 + 24 * a + 4 * s
def OB(b, s): return 256 + 144 + 24 * b + 4 * s
def D(a, b): return B(3 * a + b)
Z = 224; CS = 240
def dppadd(P, d, s, ctl, bm='0xf'):
    return P.add(f"v_add_f32_dpp v{d}, v{s}, v{s} {ctl} row_mask:0xf bank_mask:{bm}", 'd', [d], [s, d])
def m_row(P, a, pk):
    P.tag = f'r{a}'
    if pk:
        for r in range(0, 16, 2): P.pk("v_pk_add_f32", Z + r, D(a, 0) + r, D(a, 1) + r); P.pk("v_pk_add_f32", Z + r, Z + r, D(a, 2) + r)
    else:
        for r in range(16): P.v("v_add_f32", Z + r, D(a, 0) + r, D(a, 1) + r); P.v("v_add_f32", Z + r, Z + r, D(a, 2) + r)
    for g in range(8): dppadd(P, Z + g, Z + g, "row_ror:8", "0x3"); dppadd(P, Z + g, Z + g + 8, "row_ror:8", "0xc")
    for g in range(4): dppadd(P, Z + g, Z + g, "row_half_mirror", "0x5"); dppadd(P, Z + g, Z + g + 4, "row_half_mirror", "0xa")
    for c in ("quad_perm:[1,0,3,2]", "quad_perm:[2,3,0,1]"):
        for g in range(4): dppadd(P, Z + g, Z + g, c)
    for g in range(4):
        P.v("v_mov_b32", Z + 4 + g, Z + g); P.swap16(Z + g, Z + 4 + g); P.v("v_add_f32", Z + g, Z + g, Z + 4 + g); P.v("v_mul_f32", Z + g, f"s{S_K96}", Z + g)
    for b in range(3):
        for r in range(16):
            d = D(a, b) + r
            P.add(f"v_subrev_f32_dpp v{d}, v{Z+(r&3)}, v{d} row_newbcast:{4*(r>>2)} row_mask:0xf bank_mask:0xf", 'd', [d], [d, Z + (r & 3)])
def colfin(P, b, pk, scale, sneg, c):
    P.tag = f'c{b}'
    regs = [D(a, b) + r for a in range(3) for r in range(16)]
    if pk:
        P.pk("v_pk_add_f32", c, regs[0], regs[2]); P.pk("v_pk_add_f32", c + 2, regs[4], regs[6])
        for j, r in enumerate(regs[8::2]): P.pk("v_pk_add_f32", c + 2 * (j & 1), c + 2 * (j & 1), r)
        P.pk("v_pk_add_f32", c, c, c + 2)
    else:
        P.v("v_add_f32", c, regs[0], regs[1]); P.v("v_add_f32", c + 1, regs[2], regs[3])
        for j, r in enumerate(regs[4:]): P.v("v_add_f32", c + (j & 1), c + (j & 1), r)
    P.v("v_add_f32", c, c, c + 1); P.v("v_mov_b32", c + 1, c); P.swap32(c, c + 1); P.v("v_add_f32", c, c, c + 1)
    P.v("v_mul_f32", c, sneg, c)
    for a in range(3):
        if pk:
            for r in range(0, 16, 2): P.pk("v_pk_fma_f32", D(a, b) + r, D(a, b) + r, sp(scale), c, extra=" op_sel_hi:[1,1,0]")
        else:
            for r in range(16): P.v("v_fma_f32", D(a, b) + r, D(a, b) + r, f"s{scale}", c)
        cvt8(P, D(a, b), D(a, b))
        for s2 in range(2):
            m = 6 * b + 2 * a + s2; P.dsw(PV_WA if m < NRES_MT else PV_WB, D(a, b) + 4 * s2, m * K)
def raw(lines):
    return [l.split(";")[0].strip() for l in lines.strip().split("\n") if l.split(";")[0].strip()]
def done_pos(seq, want):
    import re
    nds = 0; need = -1; seen = 0
    for i, x in enumerate(seq):
        if x.kind in LGKM:
            if x in want: need = nds; seen += 1
            nds += 1
        if x.kind == 'wait' and seen == len(want) and nds - 1 - int(re.search(r'lgkmcnt\((\d+)\)', x.text).group(1)) >= need: return i
def build(cfg):
    L = []; A = lambda s: L.extend(raw(s)); hist = []; rep = []
    def emit(seq, check=True):
        seq = insert_waits(seq, report=rep if check else None)
        seq = fix_hazards(seq, prefix=hist[-40:], report=rep if check else None)
        L.extend(x.text for x in seq); hist.extend(seq); return seq
    def stamp(k):
        if cfg.prof: A(f"s_memtime s[98:99]\n s_memrealtime s[100:101]\n s_waitcnt lgkmcnt(0)\n s_sub_u32 s{76+k}, s98, s68\n s_sub_u32 s{8+k}, s100, s37")
    def sch(l, name, st=None, **kw):
        if st is None:
            st = {}; t = 0
            for x in l: st.setdefault(x.tag, t); t += max(OCC[x.kind], PIPE.get(x.kind, 0)) * 0.6
        setprio(l, st); return schedule(l, name, it1=300, it2=100000, seeds=1, T0=0.7, T1=0.2, endw=0, endx=0, **kw)[0]
    W = lambda t: Ins("s_waitcnt " + t, 'wait'); BAR = lambda: Ins("s_barrier", 'bar')
    A(f"""
    s_cmp_ge_u32 s2, 256
    s_cbranch_scc1 L_end
    s_load_dwordx8 s[4:11], s[0:1], 0
    s_load_dwordx4 s[12:15], s[0:1], 32
    {"s_memtime s[68:69]" if cfg.prof else ""}
    {"s_memrealtime s[86:87]" if cfg.prof else ""}
    s_getpc_b64 s[96:97]
    L_pc:
    v_lshlrev_b32 v1, 6, v0
    """)
    if cfg.pf:
        A("s_mov_b32 s98, L_codeend-L_pc-4")
        for k in range(cfg.npf):
            A(f"v_add_u32 v2, {16384*k}, v1\n v_min_u32 v2, s98, v2\n v_mov_b32 v3, s97\n v_add_co_u32 v2, vcc, s96, v2\n v_addc_co_u32 v3, vcc, 0, v3, vcc\n global_load_dword v{60+k}, v[2:3], off")
    A(f"""
    v_lshrrev_b32 v1, 6, v0
    v_and_b32 v45, 63, v0            ; lane
    v_readfirstlane_b32 s{S_W}, v1
    v_lshlrev_b32 v{PV_L}, 4, v45
    v_and_b32 v44, 31, v45           ; i
    v_lshrrev_b32 v43, 5, v45        ; h
    s_mov_b32 s26, 55296
    s_mov_b32 s27, 0x00020000
    s_mov_b32 s30, 18432
    s_mov_b32 s31, 0x00020000
    s_lshr_b32 s{S_MAT}, s{S_W}, 1
    s_and_b32 s34, s{S_W}, 1
    s_mul_i32 s43, s{S_MAT}, {18*K}
    s_lshl_b32 s43, s43, s34
    s_mul_i32 s94, s34, {36*K}
    s_add_u32 s43, s43, s94
    s_add_u32 s43, s43, {48*K}
    s_mul_i32 s44, s34, 192
    v_and_b32 v46, 0x13, v44
    v_and_b32 v47, 4, v44
    v_and_b32 v48, 8, v44
    v_lshl_or_b32 v46, v47, 1, v46
    v_lshrrev_b32 v48, 1, v48
    v_or_b32 v46, v46, v48           ; pi(i)
    v_mul_u32_u24 v47, 576, v46
    v_lshl_add_u32 v{PV_G}, v43, 4, v47
    """)
    for k in range(3):
        A(f"""
        v_add_u32 v49, {64*k}, v45
        v_mul_u32_u24 v47, 5462, v49
        v_lshrrev_b32 v47, 16, v47
        v_mul_u32_u24 v48, 12, v47
        v_sub_u32 v48, v49, v48
        v_lshrrev_b32 v50, 2, v47
        v_xor_b32 v48, v48, v50
        v_mul_u32_u24 v47, 576, v47
        v_add_u32 v47, {192-1024*k}, v47
        v_lshl_add_u32 v{PA+k}, v48, 4, v47
        """)
    setup1 = f"""
    s_mov_b32 s16, s4
    s_mov_b32 s17, s5
    s_mov_b32 s18, {NB}
    s_mov_b32 s19, 0x00020000
    s_mul_i32 s{S_REG}, s{S_W}, 12288
    s_mov_b32 s{S_U}, s2
    s_mul_i32 s96, s{S_W}, {FS}
    s_mov_b32 s98, {2*RS}
    """ + "\n".join(unit_base(S_N0, S_U, 42, 45)) + f"\n s_add_u32 s{S_N1}, s{S_N0}, {RS}\n"
    for n in range(3):
        setup1 += f"""
        v_add_u32 v49, {64*n}, v45
        v_mul_u32_u24 v47, 683, v49
        v_lshrrev_b32 v47, 16, v47
        v_mul_u32_u24 v48, 96, v47
        v_sub_u32 v48, v49, v48
        v_xor_b32 v48, v48, v47
        v_xor_b32 v48, s{S_W}, v48
        v_lshlrev_b32 v48, 4, v48
        v_mul_lo_u32 v47, v47, s98
        v_add3_u32 v{V_DMA+n}, v47, v48, s96
        {f"v_subrev_u32 v{V_DMA+n}, {n*1024}, v{V_DMA+n}" if n else ""}
        v_xor_b32 v{V_DMA+3+n}, 32, v{V_DMA+n}
        v_add_u32 v{V_DMA+3+n}, {4*RS}, v{V_DMA+3+n}
        """
    def wdma():
        for g in range(6):
            A(f"s_add_u32 m0, s43, {3072*g}\n s_add_u32 s42, s44, {16*576*g}")
            for k in range(3): A(f"buffer_load_dwordx4 v{PA+k}, s[24:27], s42 offen offset:{1024*k} lds")
    def xdma():
        P = Prog(); dma_group(P, cfg, False); L.extend(x.text for x in fix_hazards(P.l))
    A(f"""
    s_cmp_eq_u32 s{S_MAT}, 0
    s_waitcnt lgkmcnt(0)
    s_cselect_b32 s24, s6, s10
    s_cselect_b32 s25, s7, s11
    s_cselect_b32 s28, s8, s12
    s_cselect_b32 s29, s9, s13
    {"s_mov_b32 s37, s86" if cfg.prof else ""}
    s_cmp_eq_u32 s34, 0
    s_cbranch_scc0 L_wl
    """)
    wdma()
    for a in range(3):
        A(f"s_mov_b32 s42, {32*576*a}")
        for s in range(6): A(f"buffer_load_dwordx4 {vr(OA(a,s),4)}, v{PV_G}, s[24:27], s42 offen offset:{32*s}")
    A(setup1 + "s_branch L_ld")
    L.append("L_wl:")
    A(setup1); wdma()
    for g in range(5):
        A(f"s_add_u32 m0, s43, {18*K+4096*g}\n s_mov_b32 s42, {4096*g}")
        for k in range(4 if g < 4 else 2): A(f"buffer_load_dwordx4 v{PV_L}, s[28:31], s42 offen offset:{1024*k} lds")
    L.append("L_ld:")
    xdma()
    A(f"""
    s_mov_b32 s{S_BQ}, s{S_N0}
    s_add_u32 s{S_U}, s{S_U}, 256
    """ + "\n".join(unit_base(S_N0, S_U, 42, 45)) + f"""
    s_add_u32 s{S_N1}, s{S_N0}, {RS}
    s_mov_b32 s{S_CQ}, s{S_N0}
    s_add_u32 s{S_REG}, s{S_REG}, {48*K}
    s_mov_b32 s{S_DX}, {48*K}
    s_mov_b32 s{S_DY}, {48*K}
    s_mov_b32 s20, s14
    s_mov_b32 s21, s15
    s_mov_b32 s22, {NB}
    s_mov_b32 s23, 0x00020000
    s_mov_b32 s{S_HI}, 0xffff0000
    s_mov_b32 s{S_K96}, {hex(f2u(1/96))}
    s_mov_b32 s{S_EPS}, {hex(f2u(9216e-5))}
    s_mov_b32 s{S_96}, {hex(f2u(96.0))}
    s_mov_b32 s{S_96P}, {hex(f2u(96.0))}
    s_mov_b32 s{S_96P+1}, {hex(f2u(96.0))}
    s_mov_b32 s{S_KAP}, {hex(f2u(KAPPA))}
    s_mov_b32 s{S_KAP+1}, {hex(f2u(KAPPA))}
    s_mov_b32 s{S_KN}, {hex(f2u(-KAPPA/96))}
    ; raw read addresses
    v_bfe_u32 v47, v46, 2, 2
    v_xor_b32 v47, v47, v43
    v_mul_u32_u24 v48, 192, v46
    v_lshl_add_u32 v48, v47, 4, v48
    v_add_u32 v{PV_K}, s43, v48
    v_xor_b32 v{PV_K+1}, 32, v{PV_K}
    s_add_u32 s95, s43, {18*K}
    v_bfe_u32 v47, v45, 2, 2
    v_lshl_add_u32 v47, v43, 3, v47
    v_mul_u32_u24 v47, 192, v47
    v_and_b32 v48, 16, v45
    v_lshl_add_u32 v47, v48, 1, v47
    v_and_b32 v48, 1, v45
    v_lshl_add_u32 v47, v48, 4, v47
    v_and_b32 v48, 2, v45
    v_lshl_add_u32 v47, v48, 2, v47
    v_add_u32 v{PV_O}, s95, v47
    ; fragment write bases  M: t (48K,86K) s (122K,122K);  W: t 104K s 140K
    s_cmp_eq_u32 s{S_MAT}, 0
    s_mov_b32 s96, {122*K}
    s_mov_b32 s97, {140*K}
    s_cselect_b32 s94, {48*K}, s96
    s_cselect_b32 s95, {86*K}, s96
    s_cselect_b32 s93, {104*K}, s97
    s_cmp_eq_u32 s34, 0
    s_cselect_b32 s94, s94, s93
    s_cselect_b32 s95, s95, s93
    v_add_u32 v{PV_WA}, s94, v{PV_L}
    v_add_u32 v{PV_WB}, s95, v{PV_L}
    v_add_u32 v{V_W}, {96*K}, v{PV_L}
    v_add_u32 v{PV_S}, {48*K}, v{PV_L}
    ; persistent registers
    v_and_b32 v50, 3, v44            ; frame (stage 1)
    v_lshrrev_b32 v49, 2, v44        ; pixel (stage 1)
    v_mul_u32_u24 v48, 192, v49
    v_mul_u32_u24 v47, 12288, v50
    s_mul_i32 s96, s{S_W}, 1536
    v_add3_u32 v48, v48, v47, s96
    v_xor_b32 v47, v43, v50
    v_xor_b32 v47, s{S_W}, v47
    v_lshl_add_u32 v{V_XE}, v47, 4, v48
    v_xor_b32 v{V_XO}, 32, v{V_XE}
    v_mul_u32_u24 v48, 192, v49
    v_mul_u32_u24 v51, 1536, v50
    v_add_u32 v48, v48, v51
    v_lshl_add_u32 v48, v47, 4, v48
    s_mul_i32 s96, s{S_W}, 12288
    v_add_u32 v{V_YE}, s96, v48
    v_xor_b32 v{V_YO}, 32, v{V_YE}
    s_mul_i32 s96, s{S_W}, {9*K}
    s_add_u32 s96, s96, {122*K}
    v_add_u32 v{V_ZE}, s96, v48
    v_xor_b32 v{V_ZO}, 32, v{V_ZE}
    v_add_u32 v{V_ZR}, s96, v{PV_L}
    v_sub_u32 v48, v49, v43
    v_cmp_eq_u32 {sp(S_PM)}, 0, v48
    v_cmp_eq_u32 {sp(S_PM+2)}, 2, v48
    v_cmp_eq_u32 {sp(S_PM+4)}, 4, v48
    v_cmp_eq_u32 {sp(S_PM+6)}, 6, v48
    v_cmp_eq_u32 {sp(S_DM)}, 1, v50
    v_cmp_eq_u32 {sp(S_DM+2)}, 2, v50
    v_cmp_eq_u32 {sp(S_DM+4)}, 3, v50
    v_bfe_u32 v47, v45, 2, 2
    v_lshlrev_b32 v47, 5, v47
    v_lshl_add_u32 v47, v43, 4, v47
    v_lshl_add_u32 v{V_BP}, v50, 2, v47
    ; identity for the 4x4 unpack
    v_and_b32 v47, 1, v45
    v_lshlrev_b32 v47, 4, v47
    v_mov_b32 v48, 0x3f80
    v_lshlrev_b32 v48, v47, v48
    v_cmp_gt_u32 vcc, 2, v50
    v_bfe_u32 v47, v45, 2, 1
    v_bfe_u32 v51, v45, 4, 1
    v_cndmask_b32 v{V_ID}, 0, v48, vcc
    v_sub_u32 v{V_ID+1}, v48, v{V_ID}
    ; row-sum selectors
    v_cmp_eq_u32 vcc, v47, v51
    v_mov_b32 v48, 0x3f803f80
    v_bfe_u32 v47, v45, 3, 1
    v_cndmask_b32 v48, 0, v48, vcc
    v_cmp_eq_u32 vcc, 0, v47
    s_nop 1
    v_cndmask_b32 v47, 0, v48, vcc
    v_sub_u32 v48, v48, v47
    """)
    for k in range(4): A(f"v_accvgpr_write_b32 a{48+k}, v47\n v_accvgpr_write_b32 a{52+k}, v48")
    A(f"""
    s_waitcnt vmcnt(12)
    s_cmp_eq_u32 s34, 0
    s_cbranch_scc0 L_wf
    """)
    stamp(0)
    P = Prog(); P.tag = 'rd'
    for s in range(6):
        for b in range(3): P.dsr(OB(b, s), PV_K + (s & 1), 64 * (s >> 1) + 6144 * b)
    for a in range(3):
        P.tag = f'm{a}'
        for s in range(6):
            for b in range(3): P.mfma('m32', D(a, b), OA(a, s), OB(b, s), None if s == 0 else D(a, b))
        if a < 2: m_row(P, a, False)
    emit(sch(P.l, 'pm1', {'rd': -500, 'm0': 0, 'r0': 576, 'm1': 576, 'r1': 1152, 'm2': 1152}) + [W("lgkmcnt(0)"), BAR()])
    A(f"s_cmp_eq_u32 s{S_W}, 0\n s_cbranch_scc1 L_m2"); xdma(); L.append("L_m2:")
    P = Prog(); m_row(P, 2, True)
    for b in range(3): colfin(P, b, True, S_KAP, f"s{S_KN}", CS + 4 * b)
    emit(sch(P.l, 'pm2'))
    A(f"s_cmp_eq_u32 s{S_W}, 0\n s_cbranch_scc0 L_bf\n s_waitcnt vmcnt(0)\n s_branch L_bf")
    L.append("L_wf:"); stamp(0); hist.clear()
    P = Prog(); P.tag = 'rd'
    def rdo(b, s):
        for u in range(2): P.add(f"ds_read_b64_tr_b16 {vr(OB(b,s)+2*u,2)}, v{PV_O} offset:{(16*s+4*u)*192+64*b}", 'dsr', rng(OB(b, s) + 2 * u, 2), [PV_O])
    for s in range(6):
        rdo(0, s)
        for a in range(3): P.dsr(OA(a, s), PV_K + (s & 1), 64 * (s >> 1) + 6144 * a)
    for b in (1, 2):
        for s in range(6): rdo(b, s)
    def wm(b):
        P.tag = f'm{b}'
        for s in range(6):
            for a in range(3): P.mfma('m32', D(a, b), OA(a, s), OB(b, s), None if s == 0 else D(a, b))
    wm(0)
    emit(sch(P.l, 'pw1', {'rd': -500, 'm0': 0}) + [W("lgkmcnt(0)"), BAR()]); xdma()
    P = Prog(); wm(1); colfin(P, 0, False, S_96, "-1.0", CS); wm(2); colfin(P, 1, False, S_96, "-1.0", CS + 4)
    emit(sch(P.l, 'pw2', {'m1': 0, 'c0': 0, 'm2': 576, 'c1': 620}))
    P = Prog(); colfin(P, 2, True, S_96P, "-1.0", CS + 8); emit(sch(P.l, 'pw3'))
    L.append("L_bf:")
    A(f"s_waitcnt vmcnt(12) lgkmcnt(0)\n s_barrier"); stamp(1); hist.clear()
    if cfg.dbg == 'w':
        A(f"s_cmp_lg_u32 s2, 0\n s_cbranch_scc1 L_end\n s_mul_i32 s96, s{S_W}, {28*K}\n v_add_u32 v50, s96, v{PV_S}")
        for k in range(28):
            A(f"ds_read_b128 v[52:55], v50 offset:{k*K}\n s_waitcnt lgkmcnt(0)\n s_mov_b32 s96, {k*K}\n buffer_store_dwordx4 v[52:55], v50, {sq(S_OUT)}, s96 offen\n s_waitcnt vmcnt(0)")
        A("s_branch L_end")
    kw = dict(it1=cfg.it1, it2=cfg.it2, seeds=cfg.seeds, T0=cfg.T0, T1=cfg.T1); kw.update(cfg.sp)
    def endblk(seq, extra=()):
        dm = [i for i, x in enumerate(seq) if x.kind == 'dma']
        n = sum(x.kind == 'vst' for x in seq[dm[-1]:]) if dm else 0
        return seq + list(extra) + [W(f"vmcnt({n}) lgkmcnt(0)"), BAR()]
    P = Prog(); P.tag = 'ra'
    for m in range(10): P.dsr(RES(m), PV_S, m * K)
    early = list(P.l); P.tag = 'rb'
    for m in range(36): P.dsr(RES(10 + m), V_W, (26 + m) * K)
    seq = block(cfg, 'k0'); setprio(P.l, {'ra': -20, 'rb': 1500})
    seq = schedule(P.l + seq, 'k0', **kw)[0]
    i = done_pos(seq, early) + 1
    Pd = Prog(); dma_group(Pd, cfg, False)
    mid = [BAR(), Ins(f"s_cmp_eq_u32 s{S_W}, 0", 's'), Ins("s_cbranch_scc0 L_k0b", 's')]
    seq = insert_waits(seq, report=rep)
    emit(seq[:i] + mid, check=False); L.extend(x.text for x in fix_hazards(Pd.l)); L.append("L_k0b:")
    seq = fix_hazards(endblk(seq[i:], [Ins(f"s_sub_u32 s{S_REG}, s{S_REG}, {48*K}", 's')]), prefix=hist[-40:], report=rep)
    L.extend(x.text for x in seq); hist.extend(seq); stamp(2)
    emit(endblk(schedule(block(cfg, 'k1'), 'k1', **kw)[0])); stamp(3)
    body = schedule(block(cfg, 'loop'), 'loop', loop=True, **kw)[0]
    if cfg.nost: body = [x for x in body if x.kind != 'vst']
    if cfg.nodma: body = [x for x in body if x.kind != 'dma']
    S_ = lambda t: Ins(t, 's')
    if cfg.prof == 2:
        body = endblk(body, [S_("s_memtime s[90:91]")]); bar = body.pop()
        body += [S_("s_memtime s[92:93]"), bar, S_("s_memtime s[94:95]"), W("lgkmcnt(0)"), S_("s_sub_u32 s94, s94, s92"), S_("s_sub_u32 s92, s92, s90"),
                 S_("s_add_u32 s88, s88, s92"), S_("s_add_u32 s89, s89, s94"), S_(f"s_cmp_lt_u32 s{S_U}, 2304"), S_("s_cbranch_scc1 L_loop")]
        A("s_mov_b32 s88, 0\n s_mov_b32 s89, 0")
    elif cfg.prof == 3:
        PR = [4, 6, 8, 10, 12, 14, 90, 92, 94]; AC = [70, 71, 72, 73, 74, 75, 88, 89]
        pts = list(cfg.pts); nb = []; k = 0; mt = []
        for x in body:
            if k < len(pts) and x.t >= pts[k]: nb.append(S_(f"s_memtime s[{PR[k]}:{PR[k]+1}]")); mt.append(x.t); k += 1
            nb.append(x)
        while k < 9: nb.append(S_(f"s_memtime s[{PR[k]}:{PR[k]+1}]")); mt.append(max(x.t for x in body)); k += 1
        print("  model intervals", [mt[i + 1] - mt[i] for i in range(8)], file=sys.stderr)
        body = endblk(nb)
        for k in range(8): body += [S_(f"s_sub_u32 s{PR[k]}, s{PR[k+1]}, s{PR[k]}"), S_(f"s_add_u32 s{AC[k]}, s{AC[k]}, s{PR[k]}")]
        body += [S_(f"s_cmp_lt_u32 s{S_U}, 2304"), S_("s_cbranch_scc1 L_loop")]
        for a in AC: A(f"s_mov_b32 s{a}, 0")
    else: body = endblk(body, [Ins(f"s_cmp_lt_u32 s{S_U}, 2304", 's')]) + [Ins("s_cbranch_scc1 L_loop", 's')]
    body = fix_hazards(insert_waits(body, report=rep), prefix=body[-40:], report=rep)
    if cfg.align: L.append(".p2align 6")
    L.append("L_loop:"); emit(body); stamp(4)
    emit(schedule(block(cfg, 'kl'), 'kl', endw=0, **kw)[0]); stamp(5)
    print("  extra waits/nops:", rep, file=sys.stderr)
    if cfg.prof == 4:
        A(f"""
        s_load_dwordx2 s[4:5], s[0:1], 48
        s_memrealtime s[84:85]
        s_waitcnt lgkmcnt(0)
        s_mov_b32 s6, 256
        s_mov_b32 s7, 0x00020000
        v_mov_b32 v0, 0
        s_mov_b64 exec, 1
        s_not_b32 s37, s37
        v_mov_b32 v1, s84
        v_mov_b32 v2, s37
        buffer_atomic_umax v1, v0, s[4:7], 0 offen offset:48
        buffer_atomic_umax v2, v0, s[4:7], 0 offen offset:52
        """)
        for k in range(6): A(f"v_mov_b32 v1, s{76+k}\n buffer_atomic_umax v1, v0, s[4:7], 0 offen offset:{4*k}\n v_mov_b32 v1, s{8+k}\n buffer_atomic_umax v1, v0, s[4:7], 0 offen offset:{24+4*k}")
        A("s_waitcnt vmcnt(0)")
    elif cfg.prof:
        A(f"""
        s_load_dwordx2 s[4:5], s[0:1], 56
        s_memrealtime s[84:85]
        s_lshl_b32 s3, s2, 2
        s_add_u32 s3, s3, s{S_W}
        s_lshl_b32 s3, s3, 6
        s_waitcnt lgkmcnt(0)
        s_mov_b32 s82, s37
        s_mov_b32 s83, s84
        s_mov_b32 s6, 0x100000
        s_mov_b32 s7, 0x00020000
        v_mov_b32 v0, s3
        """)
        for k in range(8): A(f"v_mov_b32 v1, s{76+k}\n buffer_store_dword v1, v0, s[4:7], 0 offen offset:{4*k}")
        for k in range(2): A(f"v_mov_b32 v1, s{88+k}\n buffer_store_dword v1, v0, s[4:7], 0 offen offset:{32+4*k}")
        for k in range(6): A(f"v_mov_b32 v1, s{(70 if cfg.prof == 3 else 8)+k}\n buffer_store_dword v1, v0, s[4:7], 0 offen offset:{40+4*k}")
        A("s_waitcnt vmcnt(0)")
    L.append("L_end:")
    ref = open("standalone__video_video_swin__vision.s.ref").read()
    hdr = ref.split("; @launch")[0]
    txt = "\n".join((l if l.endswith(":") or l.startswith(".") else "    " + l) for l in L)
    return f"""{hdr}; @launch grid=(256,1,1) block=(256,1,1) lds=163840
.amdgcn_target "amdgcn-amd-amdhsa--gfx950"
.text
.globl {KN}
.p2align 8
.type {KN},@function
{KN}:
{txt}
    s_endpgm
L_codeend:
.section .rodata,"a"
.p2align 6
.amdhsa_kernel {KN}
  .amdhsa_next_free_vgpr 512
  .amdhsa_next_free_sgpr 102
  .amdhsa_accum_offset 256
  .amdhsa_group_segment_fixed_size 0
  .amdhsa_kernarg_size 64
  .amdhsa_user_sgpr_count 2
  .amdhsa_user_sgpr_kernarg_segment_ptr 1
  .amdhsa_system_sgpr_workgroup_id_x 1
.end_amdhsa_kernel
"""
Cfg.pts = range(0, 8000, 1024); Cfg.nost = False; Cfg.nodma = False; Cfg.npf = 4; Cfg.seeds = 1; Cfg.T0 = 0.8; Cfg.T1 = 0.2; Cfg.align = False
if __name__ == "__main__":
    open(sys.argv[1], "w").write(build(parse(sys.argv[2:])))
```

```python
import sys, os, struct
sys.path.insert(0, os.path.dirname(os.path.abspath(__file__)))
from s8 import *
KN = "standalone__video_video_swin__vision_kernel"
def f2u(x): return struct.unpack("<I", struct.pack("<f", x))[0]
KAPPA = 96 ** -0.5 * 1.4426950408889634 * 9216
K = 1024
PA, PV_G, PV_K, PV_O, PV_WA, PV_WB, PV_L, PV_S = 32, 35, 36, 38, 39, 40, 41, 42
S_MAT, S_K96, S_KAP, S_KN, S_96P = 33, 63, 70, 72, 74
def OA(a, s): return 256 + 72 + 24 * a + 4 * s
def OB(b, s): return 256 + 144 + 24 * b + 4 * s
def D(a, b): return B(3 * a + b)
Z = 224; CS = 240
def dppadd(P, d, s, ctl, bm='0xf'):
    return P.add(f"v_add_f32_dpp v{d}, v{s}, v{s} {ctl} row_mask:0xf bank_mask:{bm}", 'd', [d], [s, d])
def m_row(P, a, pk):
    P.tag = f'r{a}'
    if pk:
        for r in range(0, 16, 2): P.pk("v_pk_add_f32", Z + r, D(a, 0) + r, D(a, 1) + r); P.pk("v_pk_add_f32", Z + r, Z + r, D(a, 2) + r)
    else:
        for r in range(16): P.v("v_add_f32", Z + r, D(a, 0) + r, D(a, 1) + r); P.v("v_add_f32", Z + r, Z + r, D(a, 2) + r)
    for g in range(8): dppadd(P, Z + g, Z + g, "row_ror:8", "0x3"); dppadd(P, Z + g, Z + g + 8, "row_ror:8", "0xc")
    for g in range(4): dppadd(P, Z + g, Z + g, "row_half_mirror", "0x5"); dppadd(P, Z + g, Z + g + 4, "row_half_mirror", "0xa")
    for c in ("quad_perm:[1,0,3,2]", "quad_perm:[2,3,0,1]"):
        for g in range(4): dppadd(P, Z + g, Z + g, c)
    for g in range(4):
        P.v("v_mov_b32", Z + 4 + g, Z + g); P.swap16(Z + g, Z + 4 + g); P.v("v_add_f32", Z + g, Z + g, Z + 4 + g); P.v("v_mul_f32", Z + g, f"s{S_K96}", Z + g)
    for b in range(3):
        for r in range(16):
            d = D(a, b) + r
            P.add(f"v_subrev_f32_dpp v{d}, v{Z+(r&3)}, v{d} row_newbcast:{4*(r>>2)} row_mask:0xf bank_mask:0xf", 'd', [d], [d, Z + (r & 3)])
def colfin(P, b, pk, scale, sneg, c):
    P.tag = f'c{b}'
    regs = [D(a, b) + r for a in range(3) for r in range(16)]
    if pk:
        P.pk("v_pk_add_f32", c, regs[0], regs[2]); P.pk("v_pk_add_f32", c + 2, regs[4], regs[6])
        for j, r in enumerate(regs[8::2]): P.pk("v_pk_add_f32", c + 2 * (j & 1), c + 2 * (j & 1), r)
        P.pk("v_pk_add_f32", c, c, c + 2)
    else:
        P.v("v_add_f32", c, regs[0], regs[1]); P.v("v_add_f32", c + 1, regs[2], regs[3])
        for j, r in enumerate(regs[4:]): P.v("v_add_f32", c + (j & 1), c + (j & 1), r)
    P.v("v_add_f32", c, c, c + 1); P.v("v_mov_b32", c + 1, c); P.swap32(c, c + 1); P.v("v_add_f32", c, c, c + 1)
    P.v("v_mul_f32", c, sneg, c)
    for a in range(3):
        if pk:
            for r in range(0, 16, 2): P.pk("v_pk_fma_f32", D(a, b) + r, D(a, b) + r, sp(scale), c, extra=" op_sel_hi:[1,1,0]")
        else:
            for r in range(16): P.v("v_fma_f32", D(a, b) + r, D(a, b) + r, f"s{scale}", c)
        cvt8(P, D(a, b), D(a, b))
        for s2 in range(2):
            m = 6 * b + 2 * a + s2; P.dsw(PV_WA if m < NRES_MT else PV_WB, D(a, b) + 4 * s2, m * K)
def raw(lines):
    return [l.split(";")[0].strip() for l in lines.strip().split("\n") if l.split(";")[0].strip()]
def done_pos(seq, want):
    import re
    nds = 0; need = -1; seen = 0
    for i, x in enumerate(seq):
        if x.kind in LGKM:
            if x in want: need = nds; seen += 1
            nds += 1
        if x.kind == 'wait' and seen == len(want) and nds - 1 - int(re.search(r'lgkmcnt\((\d+)\)', x.text).group(1)) >= need: return i
def build(cfg):
    L = []; A = lambda s: L.extend(raw(s)); hist = []; rep = []
    def emit(seq, check=True):
        seq = insert_waits(seq, report=rep if check else None)
        seq = fix_hazards(seq, prefix=hist[-40:], report=rep if check else None)
        L.extend(x.text for x in seq); hist.extend(seq); return seq
    def stamp(k):
        if cfg.prof: A(f"s_memtime s[98:99]\n s_memrealtime s[100:101]\n s_waitcnt lgkmcnt(0)\n s_sub_u32 s{76+k}, s98, s68\n s_sub_u32 s{8+k}, s100, s37")
    def sch(l, name, st=None, **kw):
        if st is None:
            st = {}; t = 0
            for x in l: st.setdefault(x.tag, t); t += max(OCC[x.kind], PIPE.get(x.kind, 0)) * 0.6
        setprio(l, st); return schedule(l, name, it1=300, it2=100000, seeds=1, T0=0.7, T1=0.2, endw=0, endx=0, **kw)[0]
    W = lambda t: Ins("s_waitcnt " + t, 'wait'); BAR = lambda: Ins("s_barrier", 'bar')
    A(f"""
    s_cmp_ge_u32 s2, 256
    s_cbranch_scc1 L_end
    s_load_dwordx8 s[4:11], s[0:1], 0
    s_load_dwordx4 s[12:15], s[0:1], 32
    {"s_memtime s[68:69]" if cfg.prof else ""}
    {"s_memrealtime s[86:87]" if cfg.prof else ""}
    s_getpc_b64 s[96:97]
    L_pc:
    v_lshlrev_b32 v1, 6, v0
    """)
    if cfg.pf:
        A("s_mov_b32 s98, L_codeend-L_pc-4")
        for k in range(cfg.npf):
            A(f"v_add_u32 v2, {16384*k}, v1\n v_min_u32 v2, s98, v2\n v_mov_b32 v3, s97\n v_add_co_u32 v2, vcc, s96, v2\n v_addc_co_u32 v3, vcc, 0, v3, vcc\n global_load_dword v{60+k}, v[2:3], off")
    A(f"""
    v_lshrrev_b32 v1, 6, v0
    v_and_b32 v45, 63, v0            ; lane
    v_readfirstlane_b32 s{S_W}, v1
    v_lshlrev_b32 v{PV_L}, 4, v45
    v_and_b32 v44, 31, v45           ; i
    v_lshrrev_b32 v43, 5, v45        ; h
    s_mov_b32 s26, 55296
    s_mov_b32 s27, 0x00020000
    s_mov_b32 s30, 18432
    s_mov_b32 s31, 0x00020000
    s_lshr_b32 s{S_MAT}, s{S_W}, 1
    s_and_b32 s34, s{S_W}, 1
    s_mul_i32 s43, s{S_MAT}, {18*K}
    s_lshl_b32 s43, s43, s34
    s_mul_i32 s94, s34, {36*K}
    s_add_u32 s43, s43, s94
    s_add_u32 s43, s43, {48*K}
    s_mul_i32 s44, s34, 192
    v_and_b32 v46, 0x13, v44
    v_and_b32 v47, 4, v44
    v_and_b32 v48, 8, v44
    v_lshl_or_b32 v46, v47, 1, v46
    v_lshrrev_b32 v48, 1, v48
    v_or_b32 v46, v46, v48           ; pi(i)
    v_mul_u32_u24 v47, 576, v46
    v_lshl_add_u32 v{PV_G}, v43, 4, v47
    """)
    for k in range(3):
        A(f"""
        v_add_u32 v49, {64*k}, v45
        v_mul_u32_u24 v47, 5462, v49
        v_lshrrev_b32 v47, 16, v47
        v_mul_u32_u24 v48, 12, v47
        v_sub_u32 v48, v49, v48
        v_lshrrev_b32 v50, 2, v47
        v_xor_b32 v48, v48, v50
        v_mul_u32_u24 v47, 576, v47
        v_add_u32 v47, {192-1024*k}, v47
        v_lshl_add_u32 v{PA+k}, v48, 4, v47
        """)
    setup1 = f"""
    s_mov_b32 s16, s4
    s_mov_b32 s17, s5
    s_mov_b32 s18, {NB}
    s_mov_b32 s19, 0x00020000
    s_mul_i32 s{S_REG}, s{S_W}, 12288
    s_mov_b32 s{S_U}, s2
    s_mul_i32 s96, s{S_W}, {FS}
    s_mov_b32 s98, {2*RS}
    """ + "\n".join(unit_base(S_N0, S_U, 42, 45)) + f"\n s_add_u32 s{S_N1}, s{S_N0}, {RS}\n"
    for n in range(3):
        setup1 += f"""
        v_add_u32 v49, {64*n}, v45
        v_mul_u32_u24 v47, 683, v49
        v_lshrrev_b32 v47, 16, v47
        v_mul_u32_u24 v48, 96, v47
        v_sub_u32 v48, v49, v48
        v_xor_b32 v48, v48, v47
        v_xor_b32 v48, s{S_W}, v48
        v_lshlrev_b32 v48, 4, v48
        v_mul_lo_u32 v47, v47, s98
        v_add3_u32 v{V_DMA+n}, v47, v48, s96
        {f"v_subrev_u32 v{V_DMA+n}, {n*1024}, v{V_DMA+n}" if n else ""}
        v_xor_b32 v{V_DMA+3+n}, 32, v{V_DMA+n}
        v_add_u32 v{V_DMA+3+n}, {4*RS}, v{V_DMA+3+n}
        """
    def wdma():
        for g in range(6):
            A(f"s_add_u32 m0, s43, {3072*g}\n s_add_u32 s42, s44, {16*576*g}")
            for k in range(3): A(f"buffer_load_dwordx4 v{PA+k}, s[24:27], s42 offen offset:{1024*k} lds")
    def xdma():
        P = Prog(); dma_group(P, cfg, False); L.extend(x.text for x in fix_hazards(P.l))
    A(f"""
    s_cmp_eq_u32 s{S_MAT}, 0
    s_waitcnt lgkmcnt(0)
    s_cselect_b32 s24, s6, s10
    s_cselect_b32 s25, s7, s11
    s_cselect_b32 s28, s8, s12
    s_cselect_b32 s29, s9, s13
    {"s_mov_b32 s37, s86" if cfg.prof else ""}
    s_cmp_eq_u32 s34, 0
    s_cbranch_scc0 L_wl
    """)
    wdma()
    for a in range(3):
        A(f"s_mov_b32 s42, {32*576*a}")
        for s in range(6): A(f"buffer_load_dwordx4 {vr(OA(a,s),4)}, v{PV_G}, s[24:27], s42 offen offset:{32*s}")
    A(setup1 + "s_branch L_ld")
    L.append("L_wl:")
    A(setup1); wdma()
    for g in range(5):
        A(f"s_add_u32 m0, s43, {18*K+4096*g}\n s_mov_b32 s42, {4096*g}")
        for k in range(4 if g < 4 else 2): A(f"buffer_load_dwordx4 v{PV_L}, s[28:31], s42 offen offset:{1024*k} lds")
    L.append("L_ld:")
    xdma()
    A(f"""
    s_mov_b32 s{S_BQ}, s{S_N0}
    s_add_u32 s{S_U}, s{S_U}, 256
    """ + "\n".join(unit_base(S_N0, S_U, 42, 45)) + f"""
    s_add_u32 s{S_N1}, s{S_N0}, {RS}
    s_mov_b32 s{S_CQ}, s{S_N0}
    s_add_u32 s{S_REG}, s{S_REG}, {48*K}
    s_mov_b32 s{S_DX}, {48*K}
    s_mov_b32 s{S_DY}, {48*K}
    s_mov_b32 s20, s14
    s_mov_b32 s21, s15
    s_mov_b32 s22, {NB}
    s_mov_b32 s23, 0x00020000
    s_mov_b32 s{S_HI}, 0xffff0000
    s_mov_b32 s{S_K96}, {hex(f2u(1/96))}
    s_mov_b32 s{S_EPS}, {hex(f2u(9216e-5))}
    s_mov_b32 s{S_96}, {hex(f2u(96.0))}
    s_mov_b32 s{S_96P}, {hex(f2u(96.0))}
    s_mov_b32 s{S_96P+1}, {hex(f2u(96.0))}
    s_mov_b32 s{S_KAP}, {hex(f2u(KAPPA))}
    s_mov_b32 s{S_KAP+1}, {hex(f2u(KAPPA))}
    s_mov_b32 s{S_KN}, {hex(f2u(-KAPPA/96))}
    ; raw read addresses
    v_bfe_u32 v47, v46, 2, 2
    v_xor_b32 v47, v47, v43
    v_mul_u32_u24 v48, 192, v46
    v_lshl_add_u32 v48, v47, 4, v48
    v_add_u32 v{PV_K}, s43, v48
    v_xor_b32 v{PV_K+1}, 32, v{PV_K}
    s_add_u32 s95, s43, {18*K}
    v_bfe_u32 v47, v45, 2, 2
    v_lshl_add_u32 v47, v43, 3, v47
    v_mul_u32_u24 v47, 192, v47
    v_and_b32 v48, 16, v45
    v_lshl_add_u32 v47, v48, 1, v47
    v_and_b32 v48, 1, v45
    v_lshl_add_u32 v47, v48, 4, v47
    v_and_b32 v48, 2, v45
    v_lshl_add_u32 v47, v48, 2, v47
    v_add_u32 v{PV_O}, s95, v47
    ; fragment write bases  M: t (48K,86K) s (122K,122K);  W: t 104K s 140K
    s_cmp_eq_u32 s{S_MAT}, 0
    s_mov_b32 s96, {122*K}
    s_mov_b32 s97, {140*K}
    s_cselect_b32 s94, {48*K}, s96
    s_cselect_b32 s95, {86*K}, s96
    s_cselect_b32 s93, {104*K}, s97
    s_cmp_eq_u32 s34, 0
    s_cselect_b32 s94, s94, s93
    s_cselect_b32 s95, s95, s93
    v_add_u32 v{PV_WA}, s94, v{PV_L}
    v_add_u32 v{PV_WB}, s95, v{PV_L}
    v_add_u32 v{V_W}, {96*K}, v{PV_L}
    v_add_u32 v{PV_S}, {48*K}, v{PV_L}
    ; persistent registers
    v_and_b32 v50, 3, v44            ; frame (stage 1)
    v_lshrrev_b32 v49, 2, v44        ; pixel (stage 1)
    v_mul_u32_u24 v48, 192, v49
    v_mul_u32_u24 v47, 12288, v50
    s_mul_i32 s96, s{S_W}, 1536
    v_add3_u32 v48, v48, v47, s96
    v_xor_b32 v47, v43, v50
    v_xor_b32 v47, s{S_W}, v47
    v_lshl_add_u32 v{V_XE}, v47, 4, v48
    v_xor_b32 v{V_XO}, 32, v{V_XE}
    v_mul_u32_u24 v48, 192, v49
    v_mul_u32_u24 v51, 1536, v50
    v_add_u32 v48, v48, v51
    v_lshl_add_u32 v48, v47, 4, v48
    s_mul_i32 s96, s{S_W}, 12288
    v_add_u32 v{V_YE}, s96, v48
    v_xor_b32 v{V_YO}, 32, v{V_YE}
    s_mul_i32 s96, s{S_W}, {9*K}
    s_add_u32 s96, s96, {122*K}
    v_add_u32 v{V_ZE}, s96, v48
    v_xor_b32 v{V_ZO}, 32, v{V_ZE}
    v_add_u32 v{V_ZR}, s96, v{PV_L}
    v_sub_u32 v48, v49, v43
    v_cmp_eq_u32 {sp(S_PM)}, 0, v48
    v_cmp_eq_u32 {sp(S_PM+2)}, 2, v48
    v_cmp_eq_u32 {sp(S_PM+4)}, 4, v48
    v_cmp_eq_u32 {sp(S_PM+6)}, 6, v48
    v_cmp_eq_u32 {sp(S_DM)}, 1, v50
    v_cmp_eq_u32 {sp(S_DM+2)}, 2, v50
    v_cmp_eq_u32 {sp(S_DM+4)}, 3, v50
    v_bfe_u32 v47, v45, 2, 2
    v_lshlrev_b32 v47, 5, v47
    v_lshl_add_u32 v47, v43, 4, v47
    v_lshl_add_u32 v{V_BP}, v50, 2, v47
    ; identity for the 4x4 unpack
    v_and_b32 v47, 1, v45
    v_lshlrev_b32 v47, 4, v47
    v_mov_b32 v48, 0x3f80
    v_lshlrev_b32 v48, v47, v48
    v_cmp_gt_u32 vcc, 2, v50
    v_bfe_u32 v47, v45, 2, 1
    v_bfe_u32 v51, v45, 4, 1
    v_cndmask_b32 v{V_ID}, 0, v48, vcc
    v_sub_u32 v{V_ID+1}, v48, v{V_ID}
    ; row-sum selectors
    v_cmp_eq_u32 vcc, v47, v51
    v_mov_b32 v48, 0x3f803f80
    v_bfe_u32 v47, v45, 3, 1
    v_cndmask_b32 v48, 0, v48, vcc
    v_cmp_eq_u32 vcc, 0, v47
    s_nop 1
    v_cndmask_b32 v47, 0, v48, vcc
    v_sub_u32 v48, v48, v47
    """)
    for k in range(4): A(f"v_accvgpr_write_b32 a{48+k}, v47\n v_accvgpr_write_b32 a{52+k}, v48")
    A(f"""
    s_waitcnt vmcnt(12)
    s_cmp_eq_u32 s34, 0
    s_cbranch_scc0 L_wf
    """)
    stamp(0)
    P = Prog(); P.tag = 'rd'
    for s in range(6):
        for b in range(3): P.dsr(OB(b, s), PV_K + (s & 1), 64 * (s >> 1) + 6144 * b)
    for a in range(3):
        P.tag = f'm{a}'
        for s in range(6):
            for b in range(3): P.mfma('m32', D(a, b), OA(a, s), OB(b, s), None if s == 0 else D(a, b))
        if a < 2: m_row(P, a, False)
    emit(sch(P.l, 'pm1', {'rd': -500, 'm0': 0, 'r0': 576, 'm1': 576, 'r1': 1152, 'm2': 1152}) + [W("lgkmcnt(0)"), BAR()])
    A(f"s_cmp_eq_u32 s{S_W}, 0\n s_cbranch_scc1 L_m2"); xdma(); L.append("L_m2:")
    P = Prog(); m_row(P, 2, True)
    for b in range(3): colfin(P, b, True, S_KAP, f"s{S_KN}", CS + 4 * b)
    emit(sch(P.l, 'pm2'))
    A(f"s_cmp_eq_u32 s{S_W}, 0\n s_cbranch_scc0 L_bf\n s_waitcnt vmcnt(0)\n s_branch L_bf")
    L.append("L_wf:"); stamp(0); hist.clear()
    P = Prog(); P.tag = 'rd'
    def rdo(b, s):
        for u in range(2): P.add(f"ds_read_b64_tr_b16 {vr(OB(b,s)+2*u,2)}, v{PV_O} offset:{(16*s+4*u)*192+64*b}", 'dsr', rng(OB(b, s) + 2 * u, 2), [PV_O])
    for s in range(6):
        rdo(0, s)
        for a in range(3): P.dsr(OA(a, s), PV_K + (s & 1), 64 * (s >> 1) + 6144 * a)
    for b in (1, 2):
        for s in range(6): rdo(b, s)
    def wm(b):
        P.tag = f'm{b}'
        for s in range(6):
            for a in range(3): P.mfma('m32', D(a, b), OA(a, s), OB(b, s), None if s == 0 else D(a, b))
    wm(0)
    emit(sch(P.l, 'pw1', {'rd': -500, 'm0': 0}) + [W("lgkmcnt(0)"), BAR()]); xdma()
    P = Prog(); wm(1); colfin(P, 0, False, S_96, "-1.0", CS); wm(2); colfin(P, 1, False, S_96, "-1.0", CS + 4)
    emit(sch(P.l, 'pw2', {'m1': 0, 'c0': 0, 'm2': 576, 'c1': 620}))
    P = Prog(); colfin(P, 2, True, S_96P, "-1.0", CS + 8); emit(sch(P.l, 'pw3'))
    L.append("L_bf:")
    A(f"s_waitcnt vmcnt(12) lgkmcnt(0)\n s_barrier"); stamp(1); hist.clear()
    if cfg.dbg == 'w':
        A(f"s_cmp_lg_u32 s2, 0\n s_cbranch_scc1 L_end\n s_mul_i32 s96, s{S_W}, {28*K}\n v_add_u32 v50, s96, v{PV_S}")
        for k in range(28):
            A(f"ds_read_b128 v[52:55], v50 offset:{k*K}\n s_waitcnt lgkmcnt(0)\n s_mov_b32 s96, {k*K}\n buffer_store_dwordx4 v[52:55], v50, {sq(S_OUT)}, s96 offen\n s_waitcnt vmcnt(0)")
        A("s_branch L_end")
    kw = dict(it1=cfg.it1, it2=cfg.it2, seeds=cfg.seeds, T0=cfg.T0, T1=cfg.T1); kw.update(cfg.sp)
    def endblk(seq, extra=()):
        dm = [i for i, x in enumerate(seq) if x.kind == 'dma']
        n = sum(x.kind == 'vst' for x in seq[dm[-1]:]) if dm else 0
        return seq + list(extra) + [W(f"vmcnt({n}) lgkmcnt(0)"), BAR()]
    P = Prog(); P.tag = 'ra'
    for m in range(10): P.dsr(RES(m), PV_S, m * K)
    early = list(P.l); P.tag = 'rb'
    for m in range(36): P.dsr(RES(10 + m), V_W, (26 + m) * K)
    seq = block(cfg, 'k0'); setprio(P.l, {'ra': -20, 'rb': 1500})
    seq = schedule(P.l + seq, 'k0', **kw)[0]
    i = done_pos(seq, early) + 1
    Pd = Prog(); dma_group(Pd, cfg, False)
    mid = [BAR(), Ins(f"s_cmp_eq_u32 s{S_W}, 0", 's'), Ins("s_cbranch_scc0 L_k0b", 's')]
    seq = insert_waits(seq, report=rep)
    emit(seq[:i] + mid, check=False); L.extend(x.text for x in fix_hazards(Pd.l)); L.append("L_k0b:")
    seq = fix_hazards(endblk(seq[i:], [Ins(f"s_sub_u32 s{S_REG}, s{S_REG}, {48*K}", 's')]), prefix=hist[-40:], report=rep)
    L.extend(x.text for x in seq); hist.extend(seq); stamp(2)
    emit(endblk(schedule(block(cfg, 'k1'), 'k1', **kw)[0])); stamp(3)
    body = schedule(block(cfg, 'loop'), 'loop', loop=True, **kw)[0]
    if cfg.nost: body = [x for x in body if x.kind != 'vst']
    if cfg.nodma: body = [x for x in body if x.kind != 'dma']
    S_ = lambda t: Ins(t, 's')
    if cfg.prof == 2:
        body = endblk(body, [S_("s_memtime s[90:91]")]); bar = body.pop()
        body += [S_("s_memtime s[92:93]"), bar, S_("s_memtime s[94:95]"), W("lgkmcnt(0)"), S_("s_sub_u32 s94, s94, s92"), S_("s_sub_u32 s92, s92, s90"),
                 S_("s_add_u32 s88, s88, s92"), S_("s_add_u32 s89, s89, s94"), S_(f"s_cmp_lt_u32 s{S_U}, 2304"), S_("s_cbranch_scc1 L_loop")]
        A("s_mov_b32 s88, 0\n s_mov_b32 s89, 0")
    elif cfg.prof == 3:
        PR = [4, 6, 8, 10, 12, 14, 90, 92, 94]; AC = [70, 71, 72, 73, 74, 75, 88, 89]
        pts = list(cfg.pts); nb = []; k = 0; mt = []
        for x in body:
            if k < len(pts) and x.t >= pts[k]: nb.append(S_(f"s_memtime s[{PR[k]}:{PR[k]+1}]")); mt.append(x.t); k += 1
            nb.append(x)
        while k < 9: nb.append(S_(f"s_memtime s[{PR[k]}:{PR[k]+1}]")); mt.append(max(x.t for x in body)); k += 1
        print("  model intervals", [mt[i + 1] - mt[i] for i in range(8)], file=sys.stderr)
        body = endblk(nb)
        for k in range(8): body += [S_(f"s_sub_u32 s{PR[k]}, s{PR[k+1]}, s{PR[k]}"), S_(f"s_add_u32 s{AC[k]}, s{AC[k]}, s{PR[k]}")]
        body += [S_(f"s_cmp_lt_u32 s{S_U}, 2304"), S_("s_cbranch_scc1 L_loop")]
        for a in AC: A(f"s_mov_b32 s{a}, 0")
    else: body = endblk(body, [Ins(f"s_cmp_lt_u32 s{S_U}, 2304", 's')]) + [Ins("s_cbranch_scc1 L_loop", 's')]
    body = fix_hazards(insert_waits(body, report=rep), prefix=body[-40:], report=rep)
    if cfg.align: L.append(".p2align 6")
    L.append("L_loop:"); emit(body); stamp(4)
    emit(schedule(block(cfg, 'kl'), 'kl', endw=0, **kw)[0]); stamp(5)
    print("  extra waits/nops:", rep, file=sys.stderr)
    if cfg.prof:
        A(f"""
        s_load_dwordx2 s[4:5], s[0:1], 56
        s_memrealtime s[84:85]
        s_lshl_b32 s3, s2, 2
        s_add_u32 s3, s3, s{S_W}
        s_lshl_b32 s3, s3, 6
        s_waitcnt lgkmcnt(0)
        s_mov_b32 s82, s37
        s_mov_b32 s83, s84
        s_mov_b32 s6, 0x100000
        s_mov_b32 s7, 0x00020000
        v_mov_b32 v0, s3
        """)
        for k in range(8): A(f"v_mov_b32 v1, s{76+k}\n buffer_store_dword v1, v0, s[4:7], 0 offen offset:{4*k}")
        for k in range(2): A(f"v_mov_b32 v1, s{88+k}\n buffer_store_dword v1, v0, s[4:7], 0 offen offset:{32+4*k}")
        for k in range(6): A(f"v_mov_b32 v1, s{(70 if cfg.prof == 3 else 8)+k}\n buffer_store_dword v1, v0, s[4:7], 0 offen offset:{40+4*k}")
        A("s_waitcnt vmcnt(0)")
    L.append("L_end:")
    ref = open("standalone__video_video_swin__vision.s.ref").read()
    hdr = ref.split("; @launch")[0]
    txt = "\n".join((l if l.endswith(":") or l.startswith(".") else "    " + l) for l in L)
    return f"""{hdr}; @launch grid=(256,1,1) block=(256,1,1) lds=163840
.amdgcn_target "amdgcn-amd-amdhsa--gfx950"
.text
.globl {KN}
.p2align 8
.type {KN},@function
{KN}:
{txt}
    s_endpgm
L_codeend:
.section .rodata,"a"
.p2align 6
.amdhsa_kernel {KN}
  .amdhsa_next_free_vgpr 512
  .amdhsa_next_free_sgpr 102
  .amdhsa_accum_offset 256
  .amdhsa_group_segment_fixed_size 0
  .amdhsa_kernarg_size 64
  .amdhsa_user_sgpr_count 2
  .amdhsa_user_sgpr_kernarg_segment_ptr 1
  .amdhsa_system_sgpr_workgroup_id_x 1
.end_amdhsa_kernel
"""
Cfg.pts = range(0, 8000, 1024); Cfg.nost = False; Cfg.nodma = False; Cfg.npf = 4; Cfg.seeds = 1; Cfg.T0 = 0.8; Cfg.T1 = 0.2; Cfg.align = False
if __name__ == "__main__":
    open(sys.argv[1], "w").write(build(parse(sys.argv[2:])))
```

```python
from fw8 import *
FS, RS, NB = 28311552, 73728, 113246208
V_DMA = 0
V_XE, V_XO, V_YE, V_YO, V_ZE, V_W, V_BP = 6, 7, 8, 9, 10, 11, 12
V_ZO, V_ZR = 21, 18
RQ = [13, 14]; RK = [15, 16]; MX = [17, 17]; SMV, TMP = 19, 20; V_ID = 22; X8 = 24
def XR2(t, s): return 32 + 24 * t + 4 * s
def B(k): return 80 + 16 * k
R = [B(k) for k in range(5)]; Pb = [B(5 + k) for k in range(6)]
def XR1(t, s): return 256 + 24 * t + 4 * s
def SELA(t): return 256 + 48 + 4 * t
RING = 256 + 56
def RES(j): return 256 + 72 + 4 * j
NRES_MT = 10
S_X, S_OUT = 16, 20
S_W, S_REG, S_U, S_N0, S_N1, S_BQ, S_CQ = 32, 35, 36, 38, 39, 40, 41
S_CUR = 44
S_PM, S_DM = 48, 56
S_HI, S_EPS, S_96 = 62, 64, 67
S_DX, S_DY = 65, 66
def sp(a): return f"s[{a}:{a+1}]"
def sq(a): return f"s[{a}:{a+3}]"
def cnd(P, d, f, t, m):
    fs = f"v{f}" if isinstance(f, int) else f
    return P.add(f"v_cndmask_b32_e64 v{d}, {fs}, v{t}, {sp(m)}", 'v', [d], [t] + ([f] if isinstance(f, int) else []))
def dppmul(P, d, a, b, ctl): return P.add(f"v_mul_f32_dpp v{d}, v{a}, v{b} {ctl} row_mask:0xf bank_mask:0xf", 'd', [d], [a, b])
def cvt8(P, d, a):
    for k in range(8): P.cvt(d + k, a + 2 * k, a + 2 * k + 1)
def xaddr(e, o, t, s): return (e if s % 2 == 0 else o), t * 6144 + (s >> 1) * 64
def stats(P, XR, acc, r, tg):
    G = [acc, acc + 4]; S = acc + 8
    for t in range(2):
        P.tag = f"{tg}g{t}"
        for k in range(12):
            x = XR(t, k >> 1) + 2 * (k & 1); P.mfma('m4', G[t], x, x, None if k == 0 else G[t])
        for j in range(1, 4): cnd(P, G[t], G[t], G[t] + j, S_DM + 2 * (j - 1))
        P.tag = f"{tg}s{t}"
        for s in range(6): P.mfma('m16', S, SELA(t), XR(t, s), None if (t == 0 and s == 0) else S)
    P.tag = f"{tg}f"
    P.swap32(G[0], G[1]); P.v("v_add_f32", G[0], G[0], G[1])
    P.v("v_fma_f32", S, f"-v{S}", S, f"s{S_EPS}")
    P.v("v_fma_f32", G[0], G[0], f"s{S_96}", S)
    P.v("v_max_f32", G[0], f"s{S_EPS}", G[0])
    P.v("v_rsq_f32", r, G[0], kind='t')
def cinit_v(P, acc, src):
    for s2 in range(2):
        for k in range(4):
            x = src(s2) + k
            P.v("v_lshlrev_b32", acc + 8 * s2 + 2 * k, "16", x)
            P.v("v_and_b32", acc + 8 * s2 + 2 * k + 1, f"s{S_HI}", x)
def cinit_m(P, acc, src):
    for j in range(4): P.mfma('m4', acc + 4 * j, V_ID, src(j >> 1) + 2 * (j & 1))
def stage1(cfg):
    P = Prog(); rp = [0]
    def ring():
        k = rp[0]; rp[0] += 1; d = RING + 4 * (k % 4)
        P.dsr(d, V_W, k * 1024); return d
    for t in range(2):
        P.tag = f'xr1{t}'
        for s in range(6):
            a, o = xaddr(V_XE, V_XO, t, s); P.dsr(XR1(t, s), a, o, mem=[('x', t, s)])
    Q = R[4]; r = Q + 12
    stats(P, XR1, Q, r, 'st1')
    accA = [(R[0], R[1]), (R[2], R[3]), (R[0], R[1])]
    Sacc = [Q, Q + 4]
    for b in range(3):
        P.tag = f'A1{b}'
        for s in range(6):
            m = 6 * b + s; f = RES(m) if m < NRES_MT else ring()
            for t in range(2): P.mfma('m32', accA[b][t], f, XR1(t, s), None if s == 0 else accA[b][t])
        P.tag = f'C1{b}'
        for t in range(2):
            cvt8(P, accA[b][t], accA[b][t])
            for k in range(4): P.mfma('m4', Sacc[t], XR1(t, 2 * b + (k >> 1)) + 2 * (k & 1), accA[b][t] + 2 * k, None if (b == 0 and k == 0) else Sacc[t])
    P.tag = 'SMs'
    T = [Q + k for k in range(4)]; mx, nm, sm = Q + 10, Q + 11, Q + 13; Wa, Wb = Q + 8, Q + 14
    qp = lambda k: f"quad_perm:[{k},{k},{k},{k}]"
    for k in range(4):
        P.swap32(Q + k, Q + 4 + k); P.v("v_add_f32", T[k], Q + k, Q + 4 + k); dppmul(P, T[k], r, T[k], qp(k))
    P.v("v_max3_f32", mx, T[0], T[1], T[2]); P.v("v_max_f32", mx, mx, T[3]); P.v("v_mul_f32", nm, mx, r)
    for k in range(4):
        P.v("v_fma_f32", T[k], T[k], r, f"-v{nm}"); P.v("v_exp_f32", T[k], T[k], kind='t')
    P.v("v_add_f32", sm, T[0], T[1]); P.v("v_add_f32", mx, T[2], T[3]); P.v("v_add_f32", sm, sm, mx)
    P.v("v_rcp_f32", sm, sm, kind='t')
    for k in range(4): dppmul(P, T[k], r, T[k], qp(k))
    for k in range(4): P.v("v_mul_f32", T[k], T[k], sm)
    for k in range(2):
        P.cvt(Wa + k, T[2 * k], T[2 * k + 1]); P.cvt(Wb + k, T[2 * k], T[2 * k + 1]); P.swap32(Wa + k, Wb + k)
    PP = lambda t, u: Q + 8 * t + 4 * u
    for t in range(2):
        for u in range(2):
            for e in range(2):
                for k in range(2): cnd(P, PP(t, u) + 2 * e + k, "0", (Wa, Wb)[t] + k, S_PM + 2 * (2 * u + e))
    accU = [(R[2], R[3]), (R[0], R[1]), (R[2], R[3])]
    accO = [(R[3], R[1]), (R[1], R[3]), (R[0], R[1])]
    def Ublk(b):
        P.tag = f'U1{b}'
        for s in range(6):
            f = ring()
            for t in range(2): P.mfma('m32', accU[b][t], XR1(t, s), f, None if s == 0 else accU[b][t])
        P.tag = f'V1{b}'
        for t in range(2): cvt8(P, accU[b][0] + 8 * t, accU[b][t])
    def Oblk(b):
        for t in range(2):
            P.tag = f'O1{b}{t}'; a = accO[b][t]
            if (2 * b + t) in cfg.c1v:
                for s2 in range(2):
                    ad, o = xaddr(V_XE, V_XO, t, 2 * b + s2); P.dsr(a + 8 + 4 * s2, ad, o, mem=[('x', t, 2 * b + s2)])
                cinit_v(P, a, lambda s2: a + 8 + 4 * s2)
            else: cinit_m(P, a, lambda s2: XR1(t, 2 * b + s2))
            for u in range(2): P.mfma('m32', a, accU[b][0] + 8 * t + 4 * u, PP(t, u), a)
            cvt8(P, a, a)
            for s2 in range(2):
                ad, o = xaddr(V_XE, V_XO, t, 2 * b + s2); P.dsw(ad, a + 4 * s2, o, mem=[('x', t, 2 * b + s2)])
    Ublk(0); Ublk(1); Oblk(0); Ublk(2); Oblk(1); Oblk(2)
    P.tag = 'xt'
    for v in (V_XE, V_XO): P.add(f"v_add_u32 v{v}, s{S_DX}, v{v}", 'v', [v], [v], suse=['dx'])
    P.s(f"s_sub_u32 s{S_DX}, 0, s{S_DX}", sdef=['dx', 'scc'])
    return P.l
def unit_base(dst, u, t0, t1):
    return [f"s_mul_i32 s{t0}, s{u}, 43691", f"s_lshr_b32 s{t0}, s{t0}, 21", f"s_mul_i32 s{t1}, s{t0}, 48",
            f"s_sub_u32 s{t1}, s{u}, s{t1}", f"s_mul_i32 s{t0}, s{t0}, {8*RS}", f"s_mul_i32 s{t1}, s{t1}, 1536", f"s_add_u32 s{dst}, s{t0}, s{t1}"]
def dma_group(P, cfg, dep, ts=(0, 1)):
    for t in ts:
        for n in range(6):
            P.tag = f'dma{t}{n}'
            if n % 3 == 0: P.s(f"s_add_u32 m0, s{S_REG}, {t*6144+n*1024}", sdef=['m0', 'scc'], suse=['reg'])
            P.add(f"buffer_load_dwordx4 v{V_DMA+n}, {sq(S_X)}, s{(S_N0, S_N1)[t]} offen offset:{(n%3)*1024}{cfg.nt_load} lds", 'dma',
                  [], [V_DMA + n] + (rng(XR2(t, 0), 24) if dep else []), suse=['m0', 'nxt'])
def zmem(t, half): return [('z', t + half)]
def store(P, cfg, t, b, d):
    for u in range(2):
        a, o = xaddr(V_ZE, V_ZO, 0, 2 * b + u); P.dsw(a, d + 4 * u, o + 3072 * t, mem=[('z', t, 2 * b + u), ('z', t + 1, 2 * b + u)])
def flush(P, cfg, t, tmp, order=range(6)):
    for n in order:
        P.tag = f'F2{t}{n}'
        P.dsr(tmp[n], V_ZR, 1024 * n + 3072 * t, mem=[('z', t + n // 3, s) for s in range(6)])
        P.add(f"buffer_store_dwordx4 {vr(tmp[n],4)}, v{V_DMA+n}, {sq(S_OUT)}, s{S_CUR+t} offen offset:{(n%3)*1024}{cfg.st_pol}", 'vst', [], rng(tmp[n], 4) + [V_DMA + n], suse=['cur'])
def cur_update(P, cfg):
    P.tag = 'cu'
    P.s(f"s_mov_b32 s{S_CUR}, s{S_BQ}", sdef=['cur'], suse=['bq']); P.s(f"s_add_u32 s{S_CUR+1}, s{S_BQ}, {RS}", sdef=['cur', 'scc'], suse=['bq'])
    P.s(f"s_mov_b32 s{S_BQ}, s{S_CQ}", sdef=['bq'], suse=['cq']); P.s(f"s_mov_b32 s{S_CQ}, s{S_N0}", sdef=['cq'], suse=['nxt'])
def stage2(cfg, dma=True):
    P = Prog(); P0, P1, P2, P3, P4, P5 = Pb
    if dma:
        P.tag = 'nx'
        for t in [f"s_add_u32 s{S_U}, s{S_U}, 256"] + unit_base(S_N0, S_U, 42, 43) + [f"s_cmp_lt_u32 s{S_U}, 2304",
                  f"s_cselect_b32 s{S_N0}, s{S_N0}, 0x80000000", f"s_add_u32 s{S_N1}, s{S_N0}, {RS}"]: P.s(t, sdef=['nxt', 'scc'])
    for t in range(2):
        P.tag = f'xr2{t}'
        for s in range(6):
            a, o = xaddr(V_YE, V_YO, t, s); P.dsr(XR2(t, s), a, o)
        if dma: dma_group(P, cfg, True, (t,))
    P.tag = 'yt'
    for v in (V_YE, V_YO): P.add(f"v_add_u32 v{v}, s{S_DY}, v{v}", 'v', [v], [v], suse=['dy'])
    if dma: P.s(f"s_add_u32 s{S_REG}, s{S_REG}, s{S_DY}", sdef=['reg', 'scc'], suse=['dy'])
    P.s(f"s_sub_u32 s{S_DY}, 0, s{S_DY}", sdef=['dy', 'scc'])
    cur_update(P, cfg)
    if cfg.dbg == 'x1':
        h = P.l; P = Prog(); P.tag = 'O200'
        for t in range(2):
            P.tag = 'O200'
            for b in range(3): store(P, cfg, t, b, XR2(t, 2 * b))
            flush(P, cfg, t, [P0 + 4 * n for n in range(6)])
        return h, P.l
    r = P5 + 12
    stats(P, XR2, P5, r, 'st2')
    P.v("v_mov_b32", RQ[0], r); P.v("v_mov_b32", RQ[1], r); P.swap32(RQ[0], RQ[1])
    for kt in range(2): P.add(f"ds_bpermute_b32 v{RK[kt]}, v{V_BP}, v{r} offset:{128*kt}", 'dsb', [RK[kt]], [V_BP, r])
    accA = [[P0, P1, P2], [P2, P5, P2]]; Af = [[P3, P3 + 8, P4], [P4 + 8, P3, P3 + 8]]; Sa = [[P0, P1], [P2, P5]]
    for q in range(2):
        for b in range(3):
            P.tag = f'A2{q}{b}'
            for s in range(6): P.mfma('m32', accA[q][b], RES(10 + 6 * b + s), XR2(q, s), None if s == 0 else accA[q][b])
            cvt8(P, Af[q][b], accA[q][b])
        P.tag = f'S2{q}'
        for s in range(6):
            for kt in range(2): P.mfma('m32', Sa[q][kt], XR2(kt, s), Af[q][s >> 1] + 4 * (s & 1), None if s == 0 else Sa[q][kt])
    def softmax(q):
        S = [Sa[q][k >> 4] + (k & 15) for k in range(32)]; mx = MX[q]
        rk = lambda k: dppmul(P, S[k], RK[k >> 4], S[k], f"row_newbcast:{k&15}")
        P.tag = f'SM{q}a'
        for k in range(32):
            rk(k)
            if k == 2: P.v("v_max3_f32", mx, S[0], S[1], S[2])
            elif k > 2 and k % 2 == 0: P.v("v_max3_f32", mx, mx, S[k - 1], S[k])
        P.v("v_max_f32", TMP, mx, S[31]); P.v("v_max_f32", mx, mx, S[31])
        P.swap32(mx, TMP); P.v("v_max_f32", mx, mx, TMP); P.v("v_mul_f32", mx, mx, RQ[q])
        P.tag = f'SM{q}b'
        for k in range(32):
            P.v("v_fma_f32", S[k], S[k], RQ[q], f"-v{mx}"); P.v("v_exp_f32", S[k], S[k], kind='t')
            if k == 1: P.v("v_add_f32", SMV, S[0], S[1]); rk(0)
            elif k > 1: P.v("v_add_f32", SMV, SMV, S[k])
            if k >= 1: rk(k)
        P.v("v_mov_b32", TMP, SMV); P.swap32(SMV, TMP); P.v("v_add_f32", SMV, SMV, TMP); P.v("v_rcp_f32", SMV, SMV, kind='t')
        P.tag = f'SM{q}c'
        for k in range(0, 32, 2):
            P.v("v_mul_f32", S[k], S[k], SMV); P.v("v_mul_f32", S[k + 1], S[k + 1], SMV); P.cvt(Sa[q][0] + k // 2, S[k], S[k + 1])
    accU = [[P3, P4], [P4, P1], [P1, P1]]; Uf = [[P3, P3 + 8], [P4, P4 + 8], [X8, P1]]
    softmax(0)
    def U2(b, kt):
        P.tag = f'U2{b}{kt}'
        for s in range(6): P.mfma('m32', accU[b][kt], XR2(kt, s), RES(28 + 6 * b + s), None if s == 0 else accU[b][kt])
        cvt8(P, Uf[b][kt], accU[b][kt])
    for b in range(3):
        for kt in range(2):
            if 2 * b + kt < 6 - cfg.ut: U2(b, kt)
    n0 = len(P.l)
    softmax(1)
    for j in range(6 - cfg.ut, 6): U2(j >> 1, j & 1)
    accO = [[R[2], R[3], P5], [P0, P3, P4]]
    for q in range(2):
        for b in range(3):
            P.tag = f'O2{q}{b}'; a = accO[q][b]
            (cinit_m if (3 * q + b) in cfg.c2m else cinit_v)(P, a, lambda s2: XR2(q, 2 * b + s2))
            for k in range(4): P.mfma('m32', a, Uf[b][k >> 1] + 4 * (k & 1), Sa[q][0] + 4 * k, a)
            cvt8(P, a, a); store(P, cfg, q, b, a)
        if q == 0: flush(P, cfg, 0, {3 + n: accO[0][n] + 8 for n in range(3)}, (3, 4, 5))
    if cfg.late:
        flush(P, cfg, 0, [X8 + 4 * (n & 1) for n in range(3)], (0, 1, 2))
        flush(P, cfg, 1, [X8 + 4 * (~n & 1) for n in range(6)])
    else:
        flush(P, cfg, 0, [accO[0][n] + 12 for n in range(3)], (0, 1, 2))
        flush(P, cfg, 1, [accO[1][n >> 1] + 8 + 4 * (n & 1) for n in range(6)])
    return P.l[:n0 + cfg.cut], P.l[n0 + cfg.cut:]
ST_TAIL = {'U220': -700, 'U221': -500, 'SM1a': -600, 'SM1b': -300, 'SM1c': 300, 'O200': 0, 'O201': 200, 'O202': 700, 'O210': 1000, 'O211': 1300, 'O212': 1600}
ST_TAIL.update({f'F20{n}': 1000 + 200 * (n - 3) if n >= 3 else 3600 + 400 * n for n in range(6)}); ST_TAIL.update({f'F21{n}': 4800 + 400 * n for n in range(6)})
ST_S1 = {'xr10': -100, 'xr11': -50, 'st1g0': 250, 'st1s0': 300, 'st1g1': 400, 'st1s1': 450, 'st1f': 600, 'A10': 600, 'C10': 1000, 'A11': 1100, 'C11': 1500,
         'A12': 1700, 'C12': 2100, 'SMs': 2500, 'U10': 4300, 'V10': 4700, 'U11': 4900, 'V11': 5300, 'O100': 5500, 'O101': 5700, 'U12': 6000, 'V12': 6400,
         'O110': 6300, 'O111': 6700, 'O120': 6900, 'O121': 7100, 'xt': 7400}
ST_HEAD = {'nx': 0, 'xr20': 900, 'xr21': 1900, 'yt': 2300, 'cu': 2400, 'st2g0': 2200, 'st2s0': 2250, 'st2g1': 2400, 'st2s1': 2450, 'st2f': 2600,
           'A200': 2500, 'A201': 2700, 'A202': 2900, 'S20': 3200, 'A210': 3600, 'A211': 3800, 'A212': 4000, 'S21': 4300, 'SM0a': 3700, 'SM0b': 4000, 'SM0c': 4900,
           'U200': 5300, 'U201': 5500, 'U210': 5800, 'U211': 6100, 'U220': 6600, 'U221': 7000, 'SM1a': 5600, 'SM1b': 6400, 'SM1c': 7400}
ST_HEAD.update({f'dma{t}{n}': 1200 + 1600 * t + 270 * n for t in range(2) for n in range(6)})
def retag(l, pre):
    for x in l: x.tag = pre + x.tag
def block(cfg, which):
    st = {}
    if which == 'loop' or which == 'k1':
        h, t = stage2(cfg); s1 = stage1(cfg); retag(t, 't'); seq = (t if which == 'loop' else []) + h + s1
        st.update({'t' + k: v for k, v in ST_TAIL.items()}); st.update(ST_S1); st.update(ST_HEAD)
        if which == 'k1':
            for k in ST_HEAD: st[k] = (st[k] - 2000) * 0.9 if st[k] > 2000 else 0
    elif which == 'kl':
        h, t = stage2(cfg, dma=False); cfg.late, sv = False, cfg.late; _, t2 = stage2(cfg, dma=False); cfg.late = sv; retag(t, 't'); retag(t2, 'u'); seq = t + h + t2
        st.update({'t' + k: v for k, v in ST_TAIL.items()}); st.update(ST_HEAD); st.update({'u' + k: (v if k[0] != 'F' else 1900) + 8000 for k, v in ST_TAIL.items()})
    elif which == 'k0':
        seq = stage1(cfg); st.update(ST_S1)
    setprio(seq, st)
    return seq
class Cfg:
    dbg = None; ut = 1; nt_load = " nt"; st_pol = ""; cut = 110; late = True; c1v = (); c2m = ()
    it1 = 2000; it2 = 1000000; prof = False; pf = True; sp = {}
    def __init__(s, **k):
        for a, b in k.items(): setattr(s, a, b)
def parse(args):
    kw = {}
    for a in args:
        k, v = a.split("=", 1)
        try: v = eval(v)
        except Exception: pass
        kw[k] = v
    return Cfg(**kw)
if __name__ == "__main__":
    cfg = parse(sys.argv[2:]); w = sys.argv[1]
    out, T, _ = schedule(block(cfg, w), w, loop=(w == 'loop'), it1=cfg.it1, it2=cfg.it2, **cfg.sp)
    first = {}; last = {}
    for x in out:
        if x.t >= 0: first.setdefault(x.tag, x.t); last[x.tag] = x.t
    print(" ".join(f"{k}:{first[k]}-{last[k]}" for k in first))
```

```python
import sys, os, struct
sys.path.insert(0, os.path.dirname(os.path.abspath(__file__)))
from s8 import *
KN = "standalone__video_video_swin__vision_kernel"
def f2u(x): return struct.unpack("<I", struct.pack("<f", x))[0]
KAPPA = 96 ** -0.5 * 1.4426950408889634 * 9216
K = 1024
PA, PV_G, PV_K, PV_O, PV_WA, PV_WB, PV_L, PV_S = 32, 35, 36, 38, 39, 40, 41, 42
S_MAT, S_K96, S_KAP, S_KN, S_96P = 33, 63, 70, 72, 74
def OA(a, s): return 256 + 72 + 24 * a + 4 * s
def OB(b, s): return 256 + 144 + 24 * b + 4 * s
def D(a, b): return B(3 * a + b)
Z = 224; CS = 240
def dppadd(P, d, s, ctl, bm='0xf'):
    return P.add(f"v_add_f32_dpp v{d}, v{s}, v{s} {ctl} row_mask:0xf bank_mask:{bm}", 'd', [d], [s, d])
def m_row(P, a, pk):
    P.tag = f'r{a}'
    if pk:
        for r in range(0, 16, 2): P.pk("v_pk_add_f32", Z + r, D(a, 0) + r, D(a, 1) + r); P.pk("v_pk_add_f32", Z + r, Z + r, D(a, 2) + r)
    else:
        for r in range(16): P.v("v_add_f32", Z + r, D(a, 0) + r, D(a, 1) + r); P.v("v_add_f32", Z + r, Z + r, D(a, 2) + r)
    for g in range(8): dppadd(P, Z + g, Z + g, "row_ror:8", "0x3"); dppadd(P, Z + g, Z + g + 8, "row_ror:8", "0xc")
    for g in range(4): dppadd(P, Z + g, Z + g, "row_half_mirror", "0x5"); dppadd(P, Z + g, Z + g + 4, "row_half_mirror", "0xa")
    for c in ("quad_perm:[1,0,3,2]", "quad_perm:[2,3,0,1]"):
        for g in range(4): dppadd(P, Z + g, Z + g, c)
    for g in range(4):
        P.v("v_mov_b32", Z + 4 + g, Z + g); P.swap16(Z + g, Z + 4 + g); P.v("v_add_f32", Z + g, Z + g, Z + 4 + g); P.v("v_mul_f32", Z + g, f"s{S_K96}", Z + g)
    for b in range(3):
        for r in range(16):
            d = D(a, b) + r
            P.add(f"v_subrev_f32_dpp v{d}, v{Z+(r&3)}, v{d} row_newbcast:{4*(r>>2)} row_mask:0xf bank_mask:0xf", 'd', [d], [d, Z + (r & 3)])
def colfin(P, b, pk, scale, sneg, c):
    P.tag = f'c{b}'
    regs = [D(a, b) + r for a in range(3) for r in range(16)]
    if pk:
        P.pk("v_pk_add_f32", c, regs[0], regs[2]); P.pk("v_pk_add_f32", c + 2, regs[4], regs[6])
        for j, r in enumerate(regs[8::2]): P.pk("v_pk_add_f32", c + 2 * (j & 1), c + 2 * (j & 1), r)
        P.pk("v_pk_add_f32", c, c, c + 2)
    else:
        P.v("v_add_f32", c, regs[0], regs[1]); P.v("v_add_f32", c + 1, regs[2], regs[3])
        for j, r in enumerate(regs[4:]): P.v("v_add_f32", c + (j & 1), c + (j & 1), r)
    P.v("v_add_f32", c, c, c + 1); P.v("v_mov_b32", c + 1, c); P.swap32(c, c + 1); P.v("v_add_f32", c, c, c + 1)
    P.v("v_mul_f32", c, sneg, c)
    for a in range(3):
        if pk:
            for r in range(0, 16, 2): P.pk("v_pk_fma_f32", D(a, b) + r, D(a, b) + r, sp(scale), c, extra=" op_sel_hi:[1,1,0]")
        else:
            for r in range(16): P.v("v_fma_f32", D(a, b) + r, D(a, b) + r, f"s{scale}", c)
        cvt8(P, D(a, b), D(a, b))
        for s2 in range(2):
            m = 6 * b + 2 * a + s2; P.dsw(PV_WA if m < NRES_MT else PV_WB, D(a, b) + 4 * s2, m * K)
def raw(lines):
    return [l.split(";")[0].strip() for l in lines.strip().split("\n") if l.split(";")[0].strip()]
def done_pos(seq, want):
    import re
    nds = 0; need = -1; seen = 0
    for i, x in enumerate(seq):
        if x.kind in LGKM:
            if x in want: need = nds; seen += 1
            nds += 1
        if x.kind == 'wait' and seen == len(want) and nds - 1 - int(re.search(r'lgkmcnt\((\d+)\)', x.text).group(1)) >= need: return i
def build(cfg):
    L = []; A = lambda s: L.extend(raw(s)); hist = []; rep = []
    addr = [0]
    def pal():
        if cfg.adp: L.append(".p2align 5"); addr[0] = 0
    def emit(seq, check=True):
        seq = insert_waits(seq, report=rep if check else None)
        seq = fix_hazards(seq, prefix=hist[-40:], report=rep if check else None)
        if cfg.adp:
            seq, c0, c1, addr[0] = align_dp(seq, addr[0]); print(f"  align: stalls {c0} -> {c1}, end {addr[0]}", file=sys.stderr)
        L.extend(x.text for x in seq); hist.extend(seq); return seq
    def stamp(k):
        if cfg.prof: addr[0] += 28
        if cfg.prof: A(f"s_memtime s[98:99]\n s_memrealtime s[100:101]\n s_waitcnt lgkmcnt(0)\n s_sub_u32 s{76+k}, s98, s68\n s_sub_u32 s{8+k}, s100, s37")
    def sch(l, name, st=None, **kw):
        if st is None:
            st = {}; t = 0
            for x in l: st.setdefault(x.tag, t); t += max(OCC[x.kind], PIPE.get(x.kind, 0)) * 0.6
        setprio(l, st); return schedule(l, name, it1=300, it2=100000, seeds=1, T0=0.7, T1=0.2, endw=0, endx=0, **kw)[0]
    W = lambda t: Ins("s_waitcnt " + t, 'wait'); BAR = lambda: Ins("s_barrier", 'bar')
    if cfg.pf == 1:
        sh = cfg.pfsh; n = -(-65536 // (256 << sh))
        A(f"s_getpc_b64 s[96:97]\n L_pc:\n v_lshlrev_b32 v1, {sh}, v0\n s_mov_b32 s98, L_codeend-L_pc-4")
        for k in range(n):
            if k: A(f"v_add_u32 v1, {256 << sh}, v1")
            if k == n - 1: A("v_min_u32 v1, s98, v1")
            A(f"global_load_dword v{60+k}, v1, s[96:97]")
    elif cfg.pf == 2:
        sl = 65536 >> cfg.pfl
        A(f"""
        s_getpc_b64 s[96:97]
        L_pc:
        s_bfe_u32 s99, s2, {3 | (cfg.pfl << 16)}
        v_lshlrev_b32 v1, {(sl // 256).bit_length() - 1}, v0
        s_mul_i32 s99, s99, {sl}
        s_mov_b32 s98, L_codeend-L_pc-4
        v_add_u32 v1, s99, v1
        v_min_u32 v1, s98, v1
        v_and_b32 v1, -4, v1
        v_mov_b32 v3, s97
        v_add_co_u32 v2, vcc, s96, v1
        v_addc_co_u32 v3, vcc, 0, v3, vcc
        global_load_dword v60, v[2:3], off
        """)
    A(f"""
    s_cmp_ge_u32 s2, 256
    s_cbranch_scc1 L_end
    s_load_dwordx8 s[4:11], s[0:1], 0
    s_load_dwordx4 s[12:15], s[0:1], 32
    {"s_memtime s[68:69]" if cfg.prof else ""}
    {"s_memrealtime s[86:87]" if cfg.prof else ""}
    {"s_waitcnt vmcnt(0)" if cfg.pfwait else ""}
    """)
    A(f"""
    v_lshrrev_b32 v1, 6, v0
    v_and_b32 v45, 63, v0            ; lane
    v_readfirstlane_b32 s{S_W}, v1
    v_lshlrev_b32 v{PV_L}, 4, v45
    v_and_b32 v44, 31, v45           ; i
    v_lshrrev_b32 v43, 5, v45        ; h
    s_mov_b32 s26, 55296
    s_mov_b32 s27, 0x00020000
    s_mov_b32 s30, 18432
    s_mov_b32 s31, 0x00020000
    s_lshr_b32 s{S_MAT}, s{S_W}, 1
    s_and_b32 s34, s{S_W}, 1
    s_mul_i32 s43, s{S_W}, {18*K}
    s_add_u32 s43, s43, {86*K}
    s_cmp_eq_u32 s{S_W}, 0
    s_cselect_b32 s43, {48*K}, s43
    s_mul_i32 s44, s34, {18432 if cfg.elin else 384}
    v_and_b32 v46, 0x13, v44
    v_and_b32 v47, 4, v44
    v_and_b32 v48, 8, v44
    v_lshl_or_b32 v46, v47, 1, v46
    v_lshrrev_b32 v48, 1, v48
    v_or_b32 v46, v46, v48           ; pi(i)
    v_mul_u32_u24 v47, 576, v46
    v_lshl_add_u32 v{PV_G}, v43, 4, v47
    """)
    for k in range(3):
        A(f"""
        v_add_u32 v49, {64*k}, v45
        v_mul_u32_u24 v47, 5462, v49
        v_lshrrev_b32 v47, 16, v47
        v_mul_u32_u24 v48, 12, v47
        v_sub_u32 v48, v49, v48
        v_lshrrev_b32 v50, 2, v47
        v_xor_b32 v48, v48, v50
        v_mul_u32_u24 v47, 576, v47
        v_add_u32 v47, {192-1024*k}, v47
        v_lshl_add_u32 v{PA+k}, v48, 4, v47
        """)
    A(f"""
    s_cmp_eq_u32 s34, {2 if cfg.elin & 2 else 0}
    s_cselect_b64 vcc, -1, 0
    {f"v_add_u32 v{PV_L+20}, 4096, v{PV_L}" if cfg.elin else ""}
    """ + "".join(f"v_cndmask_b32 v{PA+k}, v{PV_L}, v{PA+k}, vcc\n" for k in range(3)))
    setup1 = f"""
    s_mov_b32 s18, {NB}
    s_mov_b32 s19, 0x00020000
    s_mul_i32 s{S_REG}, s{S_W}, 12288
    s_mov_b32 s{S_U}, s2
    s_mul_i32 s96, s{S_W}, {FS}
    s_mov_b32 s98, {2*RS}
    """ + "\n".join(unit_base(S_N0, S_U, 42, 45)) + f"\n s_add_u32 s{S_N1}, s{S_N0}, {RS}\n"
    for n in range(3):
        setup1 += f"""
        v_add_u32 v49, {64*n}, v45
        v_mul_u32_u24 v47, 683, v49
        v_lshrrev_b32 v47, 16, v47
        v_mul_u32_u24 v48, 96, v47
        v_sub_u32 v48, v49, v48
        v_xor_b32 v48, v48, v47
        v_xor_b32 v48, s{S_W}, v48
        v_lshlrev_b32 v48, 4, v48
        v_mul_lo_u32 v47, v47, s98
        v_add3_u32 v{V_DMA+n}, v47, v48, s96
        {f"v_subrev_u32 v{V_DMA+n}, {n*1024}, v{V_DMA+n}" if n else ""}
        v_xor_b32 v{V_DMA+3+n}, 32, v{V_DMA+n}
        v_add_u32 v{V_DMA+3+n}, {4*RS}, v{V_DMA+3+n}
        """
    A(setup1)
    def xdl():
        P = Prog(); dma_group(P, cfg, False); return [x.text for x in fix_hazards(P.l)]
    def xdma(): L.extend(xdl())
    A(f"""
    s_cmp_eq_u32 s{S_MAT}, 0
    s_waitcnt lgkmcnt(0)
    s_cselect_b32 s24, s6, s10
    s_cselect_b32 s25, s7, s11
    s_cselect_b32 s28, s8, s12
    s_cselect_b32 s29, s9, s13
    s_mov_b32 s16, s4
    s_mov_b32 s17, s5
    {"s_mov_b32 s37, s86" if cfg.prof else ""}
    {"s_memtime s[90:91]" if cfg.prof == 5 else ""}
    s_mov_b32 s45, 3072
    s_cmp_eq_u32 s34, 0
    s_cselect_b32 s28, s24, s28
    s_cselect_b32 s29, s25, s29
    s_cselect_b32 s30, s26, s30
    s_cselect_b32 s45, {3072 if cfg.elin & 2 else 16*576}, s45
    s_mov_b32 s42, 0
    """)
    issued = []
    def bgrp(g):
        o = [Ins(f"s_add_u32 m0, s43, {3072*g}", 's'), Ins("s_add_u32 s42, s42, s45" if g else "s_nop 0", 's')]
        return o + [Ins(f"buffer_load_dwordx4 v{PA+k}, s[28:31], s42 offen offset:{1024*k} lds", 'dma') for k in range(3)]
    def agrp(a):
        return [[Ins(f"s_add_u32 s42, s44, {32*576*a if not cfg.elin else 18432+6144*a}", 's')] * (sx == 0) + [Ins(f"buffer_load_dwordx4 {vr(OA(a,sx),4)}, v{PV_G}, s[24:27], s42 offen offset:{32*sx}" if not cfg.elin & 1 else f"buffer_load_dwordx4 {vr(OA(a,sx),4)}, v{PV_L + sx // 4 * 20}, s[24:27], s42 offen offset:{1024*(sx%4)}", 'vld')] for sx in range(6)]
    postx = raw(f"s_mov_b32 s{S_BQ}, s{S_N0}\n s_add_u32 s{S_U}, s{S_U}, 256\n" + "\n".join(unit_base(S_N0, S_U, 42, 45)) +
                f"\n s_add_u32 s{S_N1}, s{S_N0}, {RS}\n s_mov_b32 s{S_CQ}, s{S_N0}\n s_add_u32 s{S_REG}, s{S_REG}, {48*K}")
    def xgrp():
        g = [[]]
        for l in xdl():
            g[-1].append(Ins(l, 'dma' if l.startswith('buffer') else 's'))
            if l.startswith('buffer'): g.append([])
        g[-1] = [Ins(l, 's') for l in postx]
        return g
    setup2 = (f"""
    s_mov_b32 s{S_DX}, {48*K}
    s_mov_b32 s{S_DY}, {48*K}
    s_mov_b32 s20, s14
    s_mov_b32 s21, s15
    s_mov_b32 s22, {NB}
    s_mov_b32 s23, 0x00020000
    s_mov_b32 s{S_HI}, 0xffff0000
    s_mov_b32 s{S_K96}, {hex(f2u(1/96))}
    s_mov_b32 s{S_EPS}, {hex(f2u(9216e-5))}
    s_mov_b32 s{S_96}, {hex(f2u(96.0))}
    s_mov_b32 s{S_96P}, {hex(f2u(96.0))}
    s_mov_b32 s{S_96P+1}, {hex(f2u(96.0))}
    s_mov_b32 s{S_KAP}, {hex(f2u(KAPPA))}
    s_mov_b32 s{S_KAP+1}, {hex(f2u(KAPPA))}
    s_mov_b32 s{S_KN}, {hex(f2u(-KAPPA/96))}
    v_bfe_u32 v47, v46, 2, 2
    v_xor_b32 v47, v47, v43
    v_mul_u32_u24 v48, 192, v46
    v_lshl_add_u32 v48, v47, 4, v48
    v_add_u32 v{PV_K}, s43, v48
    v_xor_b32 v{PV_K+1}, 32, v{PV_K}
    v_bfe_u32 v47, v45, 2, 2
    v_lshl_add_u32 v47, v43, 3, v47
    v_mul_u32_u24 v47, 192, v47
    v_and_b32 v48, 16, v45
    v_lshl_add_u32 v47, v48, 1, v47
    v_and_b32 v48, 1, v45
    v_lshl_add_u32 v47, v48, 4, v47
    v_and_b32 v48, 2, v45
    v_lshl_add_u32 v47, v48, 2, v47
    v_add_u32 v{PV_O}, s43, v47
    s_cmp_eq_u32 s{S_MAT}, 0
    s_mov_b32 s96, {122*K}
    s_mov_b32 s97, {140*K}
    s_cselect_b32 s94, {48*K}, s96
    s_cselect_b32 s95, {86*K}, s96
    s_cselect_b32 s93, {104*K}, s97
    s_cmp_eq_u32 s34, 0
    s_cselect_b32 s94, s94, s93
    s_cselect_b32 s95, s95, s93
    v_add_u32 v{PV_WA}, s94, v{PV_L}
    v_add_u32 v{PV_WB}, s95, v{PV_L}
    v_add_u32 v{V_W}, {96*K}, v{PV_L}
    v_add_u32 v{PV_S}, {48*K}, v{PV_L}
    v_and_b32 v50, 3, v44
    v_lshrrev_b32 v49, 2, v44
    v_mul_u32_u24 v48, 192, v49
    v_mul_u32_u24 v47, 12288, v50
    s_mul_i32 s96, s{S_W}, 1536
    v_add3_u32 v48, v48, v47, s96
    v_xor_b32 v47, v43, v50
    v_xor_b32 v47, s{S_W}, v47
    v_lshl_add_u32 v{V_XE}, v47, 4, v48
    v_xor_b32 v{V_XO}, 32, v{V_XE}
    v_mul_u32_u24 v48, 192, v49
    v_mul_u32_u24 v51, 1536, v50
    v_add_u32 v48, v48, v51
    v_lshl_add_u32 v48, v47, 4, v48
    s_mul_i32 s96, s{S_W}, 12288
    v_add_u32 v{V_YE}, s96, v48
    v_xor_b32 v{V_YO}, 32, v{V_YE}
    s_mul_i32 s96, s{S_W}, {9*K}
    s_add_u32 s96, s96, {122*K}
    v_add_u32 v{V_ZE}, s96, v48
    v_xor_b32 v{V_ZO}, 32, v{V_ZE}
    v_add_u32 v{V_ZR}, s96, v{PV_L}
    v_sub_u32 v48, v49, v43
    v_cmp_eq_u32 {sp(S_PM)}, 0, v48
    v_cmp_eq_u32 {sp(S_PM+2)}, 2, v48
    v_cmp_eq_u32 {sp(S_PM+4)}, 4, v48
    v_cmp_eq_u32 {sp(S_PM+6)}, 6, v48
    v_cmp_eq_u32 {sp(S_DM)}, 1, v50
    v_cmp_eq_u32 {sp(S_DM+2)}, 2, v50
    v_cmp_eq_u32 {sp(S_DM+4)}, 3, v50
    v_bfe_u32 v47, v45, 2, 2
    v_lshlrev_b32 v47, 5, v47
    v_lshl_add_u32 v47, v43, 4, v47
    v_lshl_add_u32 v{V_BP}, v50, 2, v47
    v_and_b32 v47, 1, v45
    v_lshlrev_b32 v47, 4, v47
    v_mov_b32 v48, 0x3f80
    v_lshlrev_b32 v48, v47, v48
    v_cmp_gt_u32 vcc, 2, v50
    v_bfe_u32 v47, v45, 2, 1
    v_bfe_u32 v51, v45, 4, 1
    v_cndmask_b32 v{V_ID}, 0, v48, vcc
    v_sub_u32 v{V_ID+1}, v48, v{V_ID}
    v_cmp_eq_u32 vcc, v47, v51
    v_mov_b32 v48, 0x3f803f80
    v_bfe_u32 v47, v45, 3, 1
    v_cndmask_b32 v48, 0, v48, vcc
    v_cmp_eq_u32 vcc, 0, v47
    s_nop 1
    v_cndmask_b32 v47, 0, v48, vcc
    v_sub_u32 v48, v48, v47
    """)
    setup2 += "".join(f"v_accvgpr_write_b32 a{48+k}, v47\n v_accvgpr_write_b32 a{52+k}, v48\n" for k in range(4))
    lines = raw(setup2)
    def vw(lb, a): return len(lb) - 1 - max(i for i, x in enumerate(lb) if x == f'A{a}')
    def pre(a2pos, xp, ns, split0, bar):
        pre = [bgrp(g) for g in range(6)] + [sum(agrp(0), []), sum(agrp(1), [])]
        lab = ['B'] * 18 + ['A0'] * 6 + ['A1'] * 6
        if a2pos[0] < 0: pre.append(sum(agrp(2), [])); lab += ['A2'] * 6
        if xp[0] < 0: pre.append(sum(xgrp(), [])); lab += ['x'] * 12
        per = -(-len(lines) // ns); j = 0
        if split0 < 0: L.extend(lines); j = len(lines)
        for gi, g in enumerate(pre):
            if gi == bar: L.append("s_barrier")
            L.extend(x.text for x in g)
            if gi >= split0 and j < len(lines):
                e = min(j + per, len(lines))
                while e < len(lines) and next((l for l in lines[e:] if l.startswith(('s_cmp', 's_cselect'))), 's_cmp').startswith('s_cselect'): e += 1
                L.extend(lines[j:e]); j = e
        if bar == len(pre): L.append("s_barrier")
        L.extend(lines[j:])
        A(f"s_waitcnt vmcnt({vw(lab, 0)})")
        return lab
    A("s_cmp_eq_u32 s34, 0\n s_cbranch_scc0 L_wf")
    def csum(P, a):
        for b in range(3):
            P.tag = f'c{a}{b}'; c = CS + 2 * b
            for r in range(0, 16, 2):
                if a == 0 and r == 0: continue
                P.pk("v_pk_add_f32", c, D(a, b) if (a == 0 and r == 2) else c, D(a, b) + r)
    def fin(P, scale, sneg):
        for b in range(3):
            P.tag = f'f{b}'; c = CS + 2 * b
            P.v("v_add_f32", c, c, c + 1); P.v("v_mov_b32", c + 1, c); P.swap32(c, c + 1); P.v("v_add_f32", c, c, c + 1)
            P.v("v_mul_f32", c, sneg, c)
            for a in range(3):
                for r in range(0, 16, 2): P.pk("v_pk_fma_f32", D(a, b) + r, D(a, b) + r, sp(scale), c, extra=" op_sel_hi:[1,1,0]")
                cvt8(P, D(a, b), D(a, b))
                for s2 in range(2):
                    m = 6 * b + 2 * a + s2; P.dsw(PV_WA if m < NRES_MT else PV_WB, D(a, b) + 4 * s2, m * K)
    def fold(nm, rd, row, scale, sneg, a2pos, xp, *pa):
        lb = pre(a2pos, xp, *pa); stamp(0); pal()
        for a in range(3):
            P = Prog(); P.tag = 'rd'
            if a == 0: rd(P)
            P.tag = 'm'
            for s in range(6):
                for b in range(3): P.mfma('m32', D(a, b), OA(a, s), OB(b, s), None if s == 0 else D(a, b))
            q = sch(P.l, f'{nm}m{a}', {'rd': -500, 'm': 0}) if a == 0 else P.l
            P = Prog()
            if row: m_row(P, a, True)
            csum(P, a)
            if a == 2: fin(P, scale, sneg)
            q = insert_waits(q + sch(P.l, f'{nm}r{a}', cw=cfg.pcw)); w = [W(f"vmcnt({vw(lb, a)})")] if a else []
            ins = {}
            assert xp[0] > a2pos[0] or xp[0] < 0 and a2pos[0] < 0 or xp[1] > a2pos[1] + 5 * a2pos[2]
            for (ph, st0, strd), gs, nmx in ((a2pos, agrp(2), 'A2'), (xp, xgrp(), 'x')):
                if ph != a: continue
                for k, g in enumerate(gs):
                    ins.setdefault(min(st0 + k * strd, len(q) - 1), []).extend(g)
                    if any(x.kind in ('dma', 'vld') for x in g): lb.append(nmx)
            q2 = []
            for i, x in enumerate(q): q2.extend(ins.get(i, [])); q2.append(x)
            emit(w + q2)
            if cfg.prof == 6 and a < 2: A(f"s_memtime s[98:99]\n s_waitcnt lgkmcnt(0)\n s_sub_u32 s{46+a}, s98, s68"); addr[0] += 16
    def rdm(P):
        for s in range(6):
            for b in range(3): P.dsr(OB(b, s), PV_K + (s & 1), 64 * (s >> 1) + 6144 * b)
    def rdw(P):
        for s in range(6):
            for b in range(3):
                for u in range(2): P.add(f"ds_read_b64_tr_b16 {vr(OB(b,s)+2*u,2)}, v{PV_O} offset:{(16*s+4*u)*192+64*b}", 'dsr', rng(OB(b, s) + 2 * u, 2), [PV_O])
    fold('qm', rdm, True, S_KAP, f"s{S_KN}", cfg.a2m, cfg.xm, cfg.nsplit, cfg.split0, cfg.bar)
    A("s_branch L_bf")
    L.append("L_wf:"); hist.clear()
    fold('qw', rdw, False, S_96P, "-1.0", cfg.a2w, cfg.xw, cfg.nsplit, -1 if cfg.bar >= 0 else cfg.split0, 0 if cfg.bar >= 0 else -1)
    if cfg.prof == 6: pass
    L.append("L_bf:")
    if cfg.prof == 6: A("s_memtime s[98:99]\n s_waitcnt lgkmcnt(0)\n s_sub_u32 s88, s98, s68\n s_waitcnt vmcnt(0)\n s_memtime s[98:99]\n s_waitcnt lgkmcnt(0)\n s_sub_u32 s89, s98, s68")
    A(f"s_waitcnt vmcnt(0) lgkmcnt(0)\n s_barrier"); stamp(1); pal(); hist.clear()
    if cfg.dbg == 'w':
        A(f"s_cmp_lg_u32 s2, 0\n s_cbranch_scc1 L_end\n s_mul_i32 s96, s{S_W}, {28*K}\n v_add_u32 v50, s96, v{PV_S}")
        for k in range(28):
            A(f"ds_read_b128 v[52:55], v50 offset:{k*K}\n s_waitcnt lgkmcnt(0)\n s_mov_b32 s96, {k*K}\n buffer_store_dwordx4 v[52:55], v50, {sq(S_OUT)}, s96 offen\n s_waitcnt vmcnt(0)")
        A("s_branch L_end")
    kw = dict(it1=cfg.it1, it2=cfg.it2, seeds=cfg.seeds, T0=cfg.T0, T1=cfg.T1); kw.update(cfg.sp)
    def endblk(seq, extra=()):
        dm = [i for i, x in enumerate(seq) if x.kind == 'dma']
        n = sum(x.kind == 'vst' for x in seq[dm[-1]:]) if dm else 0
        return seq + list(extra) + [W(f"vmcnt({n}) lgkmcnt(0)"), BAR()]
    P = Prog(); P.tag = 'ra'
    for m in range(10): P.dsr(RES(m), PV_S, m * K)
    early = list(P.l); P.tag = 'rb'
    for m in range(36): P.dsr(RES(10 + m), V_W, (26 + m) * K)
    Pd = Prog(); dma_group(Pd, cfg, False)
    for x in Pd.l:
        if x.kind == 'dma': x.uses = x.uses | frozenset(rng(RES(0), 40))
    st = {'ra': -20, 'rb': 1500}; st.update({f'dma{t}{n}': 300 + 150 * (6 * t + n) for t in range(2) for n in range(6)})
    seq = block(cfg, 'k0'); setprio(P.l + Pd.l, st)
    k0 = dict(kw); k0.update(cfg.sp0)
    seq = insert_waits(schedule(P.l + Pd.l + seq, 'k0', **k0)[0], report=rep)
    i = min(j for j, x in enumerate(seq) if x.kind == 'dma')
    emit(endblk(seq[:i] + [BAR()] + seq[i:], [Ins(f"s_sub_u32 s{S_REG}, s{S_REG}, {48*K}", 's')])); stamp(2)
    emit(endblk(schedule(block(cfg, 'k1'), 'k1', **{**kw, **cfg.sp1})[0])); stamp(3)
    body = schedule(block(cfg, 'loop'), 'loop', loop=True, **kw)[0]
    if cfg.nost: body = [x for x in body if x.kind != 'vst']
    if cfg.nodma: body = [x for x in body if x.kind != 'dma']
    S_ = lambda t: Ins(t, 's')
    if cfg.prof == 2:
        body = endblk(body, [S_("s_memtime s[90:91]")]); bar = body.pop()
        body += [S_("s_memtime s[92:93]"), bar, S_("s_memtime s[94:95]"), W("lgkmcnt(0)"), S_("s_sub_u32 s94, s94, s92"), S_("s_sub_u32 s92, s92, s90"),
                 S_("s_add_u32 s88, s88, s92"), S_("s_add_u32 s89, s89, s94"), S_(f"s_cmp_lt_u32 s{S_U}, 2304"), S_("s_cbranch_scc1 L_loop")]
        A("s_mov_b32 s88, 0\n s_mov_b32 s89, 0")
    elif cfg.prof == 3:
        PR = [4, 6, 8, 10, 12, 14, 90, 92, 94]; AC = [70, 71, 72, 73, 74, 75, 88, 89]
        pts = list(cfg.pts); nb = []; k = 0; mt = []
        for x in body:
            if k < len(pts) and x.t >= pts[k]: nb.append(S_(f"s_memtime s[{PR[k]}:{PR[k]+1}]")); mt.append(x.t); k += 1
            nb.append(x)
        while k < 9: nb.append(S_(f"s_memtime s[{PR[k]}:{PR[k]+1}]")); mt.append(max(x.t for x in body)); k += 1
        print("  model intervals", [mt[i + 1] - mt[i] for i in range(8)], file=sys.stderr)
        body = endblk(nb)
        for k in range(8): body += [S_(f"s_sub_u32 s{PR[k]}, s{PR[k+1]}, s{PR[k]}"), S_(f"s_add_u32 s{AC[k]}, s{AC[k]}, s{PR[k]}")]
        body += [S_(f"s_cmp_lt_u32 s{S_U}, 2304"), S_("s_cbranch_scc1 L_loop")]
        for a in AC: A(f"s_mov_b32 s{a}, 0")
    else: body = endblk(body, [Ins(f"s_cmp_lt_u32 s{S_U}, 2304", 's')]) + [Ins("s_cbranch_scc1 L_loop", 's')]
    body = fix_hazards(insert_waits(body, report=rep), prefix=body[-40:], report=rep)
    if cfg.align: L.append(".p2align 6")
    if cfg.prof in (2, 3): pal()
    L.append("L_loop:"); emit(body); stamp(4)
    emit(schedule(block(cfg, 'kl'), 'kl', endw=0, **{**kw, **cfg.spl})[0]); stamp(5)
    print("  extra waits/nops:", rep, file=sys.stderr)
    if cfg.prof == 4:
        A(f"""
        s_load_dwordx2 s[4:5], s[0:1], 48
        s_memrealtime s[84:85]
        s_waitcnt lgkmcnt(0)
        s_mov_b32 s6, 256
        s_mov_b32 s7, 0x00020000
        v_mov_b32 v0, 0
        s_mov_b64 exec, 1
        s_not_b32 s37, s37
        v_mov_b32 v1, s84
        v_mov_b32 v2, s37
        buffer_atomic_umax v1, v0, s[4:7], 0 offen offset:48
        buffer_atomic_umax v2, v0, s[4:7], 0 offen offset:52
        """)
        for k in range(6): A(f"v_mov_b32 v1, s{76+k}\n buffer_atomic_umax v1, v0, s[4:7], 0 offen offset:{4*k}\n v_mov_b32 v1, s{8+k}\n buffer_atomic_umax v1, v0, s[4:7], 0 offen offset:{24+4*k}")
        A("s_waitcnt vmcnt(0)")
    elif cfg.prof:
        A(f"""
        s_load_dwordx2 s[4:5], s[0:1], 56
        s_memrealtime s[84:85]
        s_lshl_b32 s3, s2, 2
        s_add_u32 s3, s3, s{S_W}
        s_lshl_b32 s3, s3, 6
        s_waitcnt lgkmcnt(0)
        s_mov_b32 s82, s37
        s_mov_b32 s83, s84
        s_mov_b32 s6, 0x100000
        s_mov_b32 s7, 0x00020000
        v_mov_b32 v0, s3
        """)
        for k in range(8): A(f"v_mov_b32 v1, s{76+k}\n buffer_store_dword v1, v0, s[4:7], 0 offen offset:{4*k}")
        for k in range(2): A(f"v_mov_b32 v1, s{88+k}\n buffer_store_dword v1, v0, s[4:7], 0 offen offset:{32+4*k}")
        if cfg.prof == 6: A("s_mov_b32 s8, s76\n s_mov_b32 s9, s46\n s_mov_b32 s10, s47\n s_mov_b32 s11, s88\n s_mov_b32 s12, s89\n s_mov_b32 s13, s77")
        if cfg.prof == 5: A("s_mov_b32 s8, s46\n s_mov_b32 s9, s47\n s_mov_b32 s10, s88\n s_mov_b32 s11, s89\n s_mov_b32 s12, s86\n s_mov_b32 s13, s87")
        for k in range(6): A(f"v_mov_b32 v1, s{(70 if cfg.prof == 3 else 8)+k}\n buffer_store_dword v1, v0, s[4:7], 0 offen offset:{40+4*k}")
        A("s_waitcnt vmcnt(0)")
    L.append("L_end:")
    ref = open("standalone__video_video_swin__vision.s.ref").read()
    hdr = ref.split("; @launch")[0]
    txt = "\n".join((l if l.endswith(":") or l.startswith(".") else "    " + l) for l in L)
    return f"""{hdr}; @launch grid=(256,1,1) block=(256,1,1) lds=163840
.amdgcn_target "amdgcn-amd-amdhsa--gfx950"
.text
.globl {KN}
.p2align 8
.type {KN},@function
{KN}:
{txt}
    s_endpgm
L_codeend:
.section .rodata,"a"
.p2align 6
.amdhsa_kernel {KN}
  .amdhsa_next_free_vgpr 512
  .amdhsa_next_free_sgpr 102
  .amdhsa_accum_offset 256
  .amdhsa_group_segment_fixed_size 0
  .amdhsa_kernarg_size 64
  .amdhsa_user_sgpr_count 2
  .amdhsa_user_sgpr_kernarg_segment_ptr 1
  .amdhsa_system_sgpr_workgroup_id_x 1
.end_amdhsa_kernel
"""
Cfg.adp = False; Cfg.sp1 = {}; Cfg.spl = {}; Cfg.pts = range(0, 8000, 1024); Cfg.nost = False; Cfg.nodma = False; Cfg.sp0 = dict(vgap=0, dgap=120, dl=2000); Cfg.xord = 'last'; Cfg.pfl = 3; Cfg.pfsh = 7; Cfg.pfwait = False; Cfg.seeds = 1; Cfg.T0 = 0.8; Cfg.T1 = 0.2; Cfg.align = False
if __name__ == "__main__":
    open(sys.argv[1], "w").write(build(parse(sys.argv[2:])))
```
